```python
import torch

def _softmax(x, axis=-1):
    return torch.softmax(x, dim=axis)
def _gelu(x):
    return torch.nn.functional.gelu(x, approximate="tanh")
def _silu(x):
    return torch.nn.functional.silu(x)
def _sigmoid(x):
    return torch.sigmoid(x)
def _layernorm(x, axis=-1, eps=1e-5):
    m = x.mean(dim=axis, keepdim=True)
    v = x.var(dim=axis, keepdim=True, unbiased=False)
    return (x - m) / torch.sqrt(v + eps)
def _scatter_add(tgt, idx, src, axis=0):
    return tgt.clone().index_add_(axis, idx, src)
def _segment_sum(src, seg, n):
    out = torch.zeros((n,) + src.shape[1:], dtype=src.dtype)
    return out.index_add_(0, seg, src)
def _pad(x, pw):
    flat = tuple(v for pair in reversed(pw) for v in pair)
    return torch.nn.functional.pad(x, flat)

kernel_name = 'parallel_sum__sliding_block_cached__swiglu_ffn__decode'

def setup_inputs():

    _w = (lambda a: (lambda t: t.to(torch.bfloat16) if t.is_floating_point() else t)(torch.as_tensor(a)))
    def _A_setup():
        B, Sq, D = 2, 1, 512
        Hq, Hkv, Sk, Dh = 32, 8, 32768, 128
        assert Hq % Hkv == 0, (Hq, Hkv)
        return {
            "x": _w((lambda *s: torch.randn(*s, dtype=torch.bfloat16) * 0.05)(B, Sq, D)),
            "k_cache": _w((lambda *s: torch.randn(*s, dtype=torch.bfloat16) * 3.2)(B, Hkv, Sk, Dh)),
            "v_cache": _w((lambda *s: torch.randn(*s, dtype=torch.bfloat16) * 1.6)(B, Hkv, Sk, Dh)),
            "wq": _w((lambda *s: torch.randn(*s, dtype=torch.bfloat16) * 3.2)(D, Hq * Dh) * (D ** -0.5)),
            "wo": _w((lambda *s: torch.randn(*s, dtype=torch.bfloat16) * 1.6)(Hq * Dh, D) * ((Hq * Dh) ** -0.5)),
        }
    _A_in = _A_setup()

    def _B_setup():
        B, S, D, F = 2, 1, 512, 1792
        return {
            "x": _w((lambda *s: torch.randn(*s, dtype=torch.bfloat16) * 0.05)(B, S, D)),
            "w_gate": _w((lambda *s: torch.randn(*s, dtype=torch.bfloat16) * 0.05)(D, F)),
            "w_up": _w((lambda *s: torch.randn(*s, dtype=torch.bfloat16) * 0.05)(D, F)),
            "w_down": _w((lambda *s: torch.randn(*s, dtype=torch.bfloat16) * 0.05)(F, D)),
        }
    _B_in = _B_setup()

    return {
        "A_x": _A_in["x"],
        "A_k_cache": _A_in["k_cache"],
        "A_v_cache": _A_in["v_cache"],
        "A_wq": _A_in["wq"],
        "A_wo": _A_in["wo"],
        "B_x": _B_in["x"],
        "B_w_gate": _B_in["w_gate"],
        "B_w_up": _B_in["w_up"],
        "B_w_down": _B_in["w_down"],
    }

def reference(A_x, A_k_cache, A_v_cache, A_wq, A_wo, B_x, B_w_gate, B_w_up, B_w_down):
    def _A_ref(x, k_cache, v_cache, wq, wo):
        B, Sq, D = x.shape
        Hq, Dh = 32, 128
        Hkv, Sk = k_cache.shape[1], k_cache.shape[2]
        W = min(4096, max(256, Sk // 4))
        rep = Hq // Hkv
        q = (lambda x, *d: x.permute(*d))((x @ wq).reshape(B, Sq, Hq, Dh), 0, 2, 1, 3)
        k = (lambda x, n, axis: torch.repeat_interleave(x, n, dim=axis))(k_cache[:, :, Sk - W:, :], rep, axis=1)
        v = (lambda x, n, axis: torch.repeat_interleave(x, n, dim=axis))(v_cache[:, :, Sk - W:, :], rep, axis=1)
        scores = torch.einsum("bhqd,bhkd->bhqk", q, k) * (Dh ** -0.5)
        p = _softmax(scores, axis=-1)
        o = torch.einsum("bhqk,bhkd->bhqd", p, v)
        return (lambda x, *d: x.permute(*d))(o, 0, 2, 1, 3).reshape(B, Sq, Hq * Dh) @ wo

    def _B_ref(x, w_gate, w_up, w_down):
        g = _silu(x @ w_gate)
        u = x @ w_up
        return (g * u) @ w_down

    x = A_x
    xn = _layernorm(x, axis=-1)
    return x + _A_ref(xn, A_k_cache, A_v_cache, A_wq, A_wo) + _B_ref(xn, B_w_gate, B_w_up, B_w_down)
```

```python
import sys

NAME = "parallel_sum__sliding_block_cached__swiglu_ffn__decode"

QP = 0
GP = 131072
AP = GP + 8 * 2 * 2 * 1792 * 4
AP_REC = 528
OP = AP + 256 * 4 * AP_REC
WS_SIZE = OP + 256 * 1024

L_K = 0
L_V = 65536
L_XN = 131072
L_SLOT = L_XN + 4096
L_Q = L_SLOT + 16384
L_H = L_Q + 1024
L_O = L_H + 512
L_END = L_O + 1024

LIMIT = 400000

out = []


def A(s):
    out.append("    " + s)


def LBL(s):
    out.append(s + ":")


def C(s):
    out.append("    ; " + s)


S_W = 2
S_WAVE = 3
P_X, P_K, P_V, P_WQ, P_WO, P_BX, P_WG, P_WU = 16, 18, 20, 22, 24, 26, 28, 30
P_WD, P_OUT, P_DBG, P_WS = 32, 34, 36, 38
R_X, R_K, R_V, R_WQ, R_WO, R_WG, R_WU, R_WD, R_OUT, R_DBG, R_WS, R_T = (
    40, 44, 48, 52, 56, 60, 64, 68, 72, 76, 80, 84)


def srd(r):
    return f"s[{r}:{r+3}]"


def build_srd(dst, ptr, size):
    A(f"s_mov_b32 s{dst}, s{ptr}")
    A(f"s_and_b32 s{dst+1}, s{ptr+1}, 0xffff")
    A(f"s_mov_b32 s{dst+2}, {size}")
    A(f"s_mov_b32 s{dst+3}, 0x20000")


def v(i):
    return f"v{i}"


def vr(i, n):
    return f"v[{i}:{i+n-1}]"


DPP_STEPS = ["quad_perm:[1,0,3,2]", "quad_perm:[2,3,0,1]", "row_half_mirror", "row_mirror"]


def row_allreduce(regs, op):
    for st in DPP_STEPS:
        A("s_nop 1")
        for r in regs:
            A(f"v_{op}_f32_dpp v{r}, v{r}, v{r} {st} row_mask:0xf bank_mask:0xf")


def swap_allreduce(regs, tmps, op, which=("16", "32")):
    for wch in which:
        for r, t in zip(regs, tmps):
            A(f"v_mov_b32 v{t}, v{r}")
        A("s_nop 1")
        for r, t in zip(regs, tmps):
            A(f"v_permlane{wch}_swap_b32 v{r}, v{t}")
        A("s_nop 1")
        for r, t in zip(regs, tmps):
            A(f"v_{op}_f32 v{r}, v{r}, v{t}")


def wave_allreduce(regs, tmps, op):
    row_allreduce(regs, op)
    swap_allreduce(regs, tmps, op)


def round_bf16_pair(a, b, t):
    A(f"v_cvt_pk_bf16_f32 v{t}, v{a}, v{b}")
    A(f"v_lshlrev_b32 v{a}, 16, v{t}")
    A(f"v_and_b32 v{b}, 0xffff0000, v{t}")


def round_bf16_one(a, t):
    A(f"v_cvt_pk_bf16_f32 v{t}, v{a}, v{a}")
    A(f"v_lshlrev_b32 v{a}, 16, v{t}")


def poll(label, vaddr, mask_kind, tmp0, tmp1, scnt, smask):
    A(f"s_mov_b32 s{scnt}, 0")
    if mask_kind == 1:
        A(f"s_mov_b32 s{smask}, 0x01010101")
    elif mask_kind == 2:
        A(f"s_mov_b32 s{smask}, 0x02020202")
    else:
        A(f"s_mov_b32 s{smask}, 0x03030303")
    LBL(label)
    A(f"buffer_load_dword v{tmp0}, v{vaddr}, {srd(R_DBG)}, 0 offen sc1")
    A("s_waitcnt vmcnt(0)")
    if mask_kind == 1:
        A(f"v_lshrrev_b32 v{tmp1}, 1, v{tmp0}")
        A(f"v_or_b32 v{tmp0}, v{tmp0}, v{tmp1}")
    A(f"v_and_b32 v{tmp0}, s{smask}, v{tmp0}")
    A(f"v_cmp_ne_u32 vcc, s{smask}, v{tmp0}")
    A("s_nop 4")
    A(f"s_cbranch_vccz {label}_done")
    A("s_sleep 1")
    A(f"s_add_u32 s{scnt}, s{scnt}, 1")
    A(f"s_cmp_lt_u32 s{scnt}, {LIMIT}")
    A(f"s_cbranch_scc1 {label}")
    LBL(label + "_done")


def gen():
    hdr = open("cdna_kernels/" + NAME + ".s.ref").read().split("\n")
    for ln in hdr:
        if ln.startswith("; @launch"):
            break
        out.append(ln)
    out.append(f"; @launch grid=(256,1,1) block=(512,1,1) lds={L_END}")
    out.append('.amdgcn_target "amdgcn-amd-amdhsa--gfx950"')
    out.append(".text")
    out.append(f".globl {NAME}_kernel")
    out.append(".p2align 8")
    out.append(f".type {NAME}_kernel,@function")
    LBL(f"{NAME}_kernel")

    A("s_cmp_ge_u32 s2, 256")
    A("s_cbranch_scc1 L_end")
    A("s_load_dwordx16 s[16:31], s[0:1], 0")
    A("s_load_dwordx8 s[32:39], s[0:1], 64")
    A("v_lshrrev_b32 v1, 6, v0")
    A("v_and_b32 v0, 63, v0")
    A("s_nop 0")
    A("v_readfirstlane_b32 s3, v1")
    A("s_waitcnt lgkmcnt(0)")
    build_srd(R_X, P_X, 2048)
    build_srd(R_K, P_K, 134217728)
    build_srd(R_V, P_V, 134217728)
    build_srd(R_WQ, P_WQ, 4194304)
    build_srd(R_WO, P_WO, 4194304)
    build_srd(R_WG, P_WG, 1835008)
    build_srd(R_WU, P_WU, 1835008)
    build_srd(R_WD, P_WD, 1835008)
    build_srd(R_OUT, P_OUT, 2048)
    build_srd(R_DBG, P_DBG, 256)
    build_srd(R_WS, P_WS, WS_SIZE)
    A("s_cmp_ge_u32 s3, 4")
    A("s_cbranch_scc1 L_stream")

    LBL("L_aux")
    sSTR, sROW0, sCOL, sSO, sSTEP, sXB = 4, 5, 6, 7, 8, 9
    sNS, sSL0, sBSTR, sDST = 10, 11, 12, 13
    sCNT, sMSK = 14, 15
    sT0, sT1 = 88, 89
    C("x loads")
    A("v_lshlrev_b32 v1, 4, v0")
    A(f"buffer_load_dwordx4 v[2:5], v1, {srd(R_X)}, 0 offen")
    A(f"buffer_load_dwordx4 v[6:9], v1, {srd(R_X)}, 0 offen offset:1024")
    C("tile parameters by wave")
    A("s_cmp_ge_u32 s3, 2")
    A("s_cbranch_scc1 L_aux_gu")
    A(f"s_mov_b32 s{R_T}, s{R_WQ}")
    A(f"s_mov_b32 s{R_T+1}, s{R_WQ+1}")
    A(f"s_mov_b32 s{R_T+2}, 4194304")
    A(f"s_mov_b32 s{R_T+3}, 0x20000")
    A(f"s_mov_b32 s{sSTR}, 8192")
    A(f"s_and_b32 s{sT0}, s2, 3")
    A(f"s_lshl_b32 s{sROW0}, s{sT0}, 7")
    A(f"s_lshl_b32 s{sT1}, s3, 6")
    A(f"s_add_u32 s{sROW0}, s{sROW0}, s{sT1}")
    A(f"s_lshr_b32 s{sT1}, s2, 2")
    A(f"s_lshl_b32 s{sCOL}, s{sT1}, 7")
    A(f"s_mov_b32 s{sNS}, 16")
    A(f"s_mov_b32 s{sSL0}, {L_SLOT}")
    A(f"s_mov_b32 s{sBSTR}, 16384")
    A(f"s_lshl_b32 s{sDST}, s{sT0}, 15")
    A(f"s_lshl_b32 s{sT1}, s{sT1}, 8")
    A(f"s_add_u32 s{sDST}, s{sDST}, s{sT1}")
    A(f"s_add_u32 s{sDST}, s{sDST}, {QP}")
    A("s_branch L_aux_tile")
    LBL("L_aux_gu")
    A("s_cmp_eq_u32 s3, 2")
    A(f"s_cselect_b32 s{R_T}, s{R_WG}, s{R_WU}")
    A(f"s_cselect_b32 s{R_T+1}, s{R_WG+1}, s{R_WU+1}")
    A(f"s_mov_b32 s{R_T+2}, 1835008")
    A(f"s_mov_b32 s{R_T+3}, 0x20000")
    A(f"s_mov_b32 s{sSTR}, 3584")
    A(f"s_and_b32 s{sT0}, s2, 7")
    A(f"s_lshl_b32 s{sROW0}, s{sT0}, 6")
    A(f"s_lshr_b32 s{sT1}, s2, 3")
    A(f"s_lshl_b32 s{sCOL}, s{sT1}, 7")
    A(f"s_mov_b32 s{sNS}, 8")
    A(f"s_lshl_b32 s{sSL0}, s3, 12")
    A(f"s_add_u32 s{sSL0}, s{sSL0}, {L_SLOT}")
    A(f"s_mov_b32 s{sBSTR}, 14336")
    A(f"s_mul_i32 s{sDST}, s{sT0}, 28672")
    A(f"s_lshl_b32 s{sT1}, s{sT1}, 8")
    A(f"s_add_u32 s{sDST}, s{sDST}, s{sT1}")
    A(f"s_sub_u32 s{sT1}, s3, 2")
    A(f"s_mul_i32 s{sT1}, s{sT1}, 7168")
    A(f"s_add_u32 s{sDST}, s{sDST}, s{sT1}")
    A(f"s_add_u32 s{sDST}, s{sDST}, {GP}")
    LBL("L_aux_tile")
    VW = 64
    A("v_lshrrev_b32 v10, 3, v0")
    A("v_and_b32 v11, 7, v0")
    A(f"v_mul_lo_u32 v12, v10, s{sSTR}")
    A("v_lshl_add_u32 v12, v11, 4, v12")
    A(f"s_mul_i32 s{sSO}, s{sROW0}, s{sSTR}")
    A(f"s_add_u32 s{sSO}, s{sSO}, s{sCOL}")
    A(f"s_lshl_b32 s{sSTEP}, s{sSTR}, 3")
    for t in range(8):
        A(f"buffer_load_dwordx4 {vr(VW+4*t,4)}, v12, {srd(R_T)}, s{sSO} offen")
        if t < 7:
            A(f"s_add_u32 s{sSO}, s{sSO}, s{sSTEP}")

    C("layernorm")
    A("s_waitcnt vmcnt(8)")
    X0, X1 = 20, 28
    for i in range(4):
        A(f"v_lshlrev_b32 v{X0+2*i}, 16, v{2+i}")
        A(f"v_and_b32 v{X0+2*i+1}, 0xffff0000, v{2+i}")
        A(f"v_lshlrev_b32 v{X1+2*i}, 16, v{6+i}")
        A(f"v_and_b32 v{X1+2*i+1}, 0xffff0000, v{6+i}")
    for (X, s) in ((X0, 36), (X1, 37)):
        A(f"v_add_f32 v{s}, v{X}, v{X+1}")
        for i in range(2, 8):
            A(f"v_add_f32 v{s}, v{s}, v{X+i}")
    wave_allreduce([36, 37], [38, 39], "add")
    A("s_mov_b32 s88, 0x3b000000")
    A("v_mul_f32 v36, s88, v36")
    A("v_mul_f32 v37, s88, v37")
    for (X, m, s) in ((X0, 36, 40), (X1, 37, 41)):
        A(f"v_sub_f32 v42, v{X}, v{m}")
        A(f"v_mul_f32 v{s}, v42, v42")
        for i in range(1, 8):
            A(f"v_sub_f32 v42, v{X+i}, v{m}")
            A(f"v_fmac_f32 v{s}, v42, v42")
    wave_allreduce([40, 41], [38, 39], "add")
    A("v_mul_f32 v40, s88, v40")
    A("v_mul_f32 v41, s88, v41")
    round_bf16_pair(36, 37, 42)
    round_bf16_pair(40, 41, 42)
    A("s_mov_b32 s88, 0x3727c5ac")
    A("v_add_f32 v40, s88, v40")
    A("v_add_f32 v41, s88, v41")
    round_bf16_pair(40, 41, 42)
    A("v_sqrt_f32 v40, v40")
    A("v_sqrt_f32 v41, v41")
    A("s_nop 0")
    round_bf16_pair(40, 41, 42)
    A("v_rcp_f32 v44, v40")
    A("v_rcp_f32 v45, v41")
    XN = 48
    for i in range(8):
        A(f"v_sub_f32 v{X0+i}, v{X0+i}, v36")
        A(f"v_sub_f32 v{X1+i}, v{X1+i}, v37")
        round_bf16_pair(X0 + i, X1 + i, 42)
        for (X, sd, rc, dst) in ((X0, 40, 44, XN + 2 * i), (X1, 41, 45, XN + 2 * i + 1)):
            A(f"v_mul_f32 v{dst}, v{X+i}, v{rc}")
            A(f"v_fma_f32 v43, -v{dst}, v{sd}, v{X+i}")
            A(f"v_fmac_f32 v{dst}, v43, v{rc}")
        round_bf16_pair(XN + 2 * i, XN + 2 * i + 1, 42)
    A("v_lshlrev_b32 v1, 6, v0")
    A(f"v_add_u32 v1, {L_XN}, v1")
    for j in range(4):
        A(f"ds_write_b128 v1, {vr(XN+4*j,4)} offset:{16*j}")
    A("s_waitcnt lgkmcnt(0)")
    C("per-lane xn pairs for the tile rows")
    A(f"s_lshl_b32 s{sXB}, s{sROW0}, 3")
    A(f"s_add_u32 s{sXB}, s{sXB}, {L_XN}")
    A("v_lshlrev_b32 v13, 3, v10")
    A(f"v_add_u32 v13, s{sXB}, v13")
    XP = 20
    for t in range(8):
        A(f"ds_read_b64 {vr(XP+2*t,2)}, v13 offset:{64*t}")
    A("s_waitcnt lgkmcnt(0)")
    AC0, AC1 = 36, 44
    for t in range(8):
        A(f"s_waitcnt vmcnt({7-t})")
        for i in range(4):
            w = VW + 4 * t + i
            A(f"v_lshlrev_b32 v52, 16, v{w}")
            A(f"v_and_b32 v53, 0xffff0000, v{w}")
            if t == 0:
                A(f"v_mul_f32 v{AC0+2*i}, v52, v{XP}")
                A(f"v_mul_f32 v{AC0+2*i+1}, v53, v{XP}")
                A(f"v_mul_f32 v{AC1+2*i}, v52, v{XP+1}")
                A(f"v_mul_f32 v{AC1+2*i+1}, v53, v{XP+1}")
            else:
                A(f"v_fmac_f32 v{AC0+2*i}, v52, v{XP+2*t}")
                A(f"v_fmac_f32 v{AC0+2*i+1}, v53, v{XP+2*t}")
                A(f"v_fmac_f32 v{AC1+2*i}, v52, v{XP+2*t+1}")
                A(f"v_fmac_f32 v{AC1+2*i+1}, v53, v{XP+2*t+1}")
    C("slot write")
    A("s_lshl_b32 s88, s3, 3")
    A("v_add_u32 v1, s88, v10")
    A("v_lshlrev_b32 v1, 9, v1")
    A("v_lshl_add_u32 v1, v11, 5, v1")
    A(f"v_add_u32 v1, {L_SLOT}, v1")
    A(f"ds_write_b128 v1, {vr(AC0,4)}")
    A(f"ds_write_b128 v1, {vr(AC0+4,4)} offset:16")
    A(f"ds_write_b128 v1, {vr(AC1,4)} offset:256")
    A(f"ds_write_b128 v1, {vr(AC1+4,4)} offset:272")
    A("s_waitcnt lgkmcnt(0)")
    A("s_barrier")
    C("slot reduce + publish partials (waves 0,2,3)")
    A("s_cmp_eq_u32 s3, 1")
    A("s_cbranch_scc1 L_aux_p1done")
    A("s_cmp_ge_u32 s3, 2")
    A("s_cbranch_scc0 L_aux_red")
    A("s_cmp_ge_u32 s2, 224")
    A("s_cbranch_scc1 L_aux_p1done")
    LBL("L_aux_red")
    A("v_and_b32 v2, 31, v0")
    A("v_lshlrev_b32 v1, 4, v2")
    A(f"v_add_u32 v1, s{sSL0}, v1")
    for s in range(8):
        A(f"ds_read_b128 {vr(64+4*s,4)}, v1 offset:{512*s}")
    A(f"s_cmp_eq_u32 s{sNS}, 8")
    A("s_cbranch_scc1 L_aux_red8")
    for s in range(8):
        A(f"ds_read_b128 {vr(96+4*s,4)}, v1 offset:{512*(8+s)}")
    A("s_waitcnt lgkmcnt(0)")
    for s in range(8):
        for i in range(4):
            A(f"v_add_f32 v{64+4*s+i}, v{64+4*s+i}, v{96+4*s+i}")
    LBL("L_aux_red8")
    A("s_waitcnt lgkmcnt(0)")
    for s in range(1, 8):
        for i in range(4):
            A(f"v_add_f32 v{64+i}, v{64+i}, v{64+4*s+i}")
    A("v_lshrrev_b32 v3, 4, v2")
    A(f"v_mul_lo_u32 v3, v3, s{sBSTR}")
    A("v_and_b32 v4, 15, v2")
    A("v_lshl_add_u32 v3, v4, 4, v3")
    A("v_cmp_gt_u32 vcc, 32, v0")
    A("s_and_saveexec_b64 s[90:91], vcc")
    A(f"buffer_store_dwordx4 v[64:67], v3, {srd(R_WS)}, s{sDST} offen sc1")
    A("s_mov_b64 exec, s[90:91]")
    A("s_waitcnt vmcnt(0)")
    LBL("L_aux_p1done")
    A("s_barrier")
    A("s_cmp_lg_u32 s3, 0")
    A("s_cbranch_scc1 L_aux_w1")
    C("wave 0: flag=1 then poll all flags")
    A("v_mov_b32 v2, 1")
    A("v_mov_b32 v3, s2")
    A("s_mov_b64 exec, 1")
    A(f"buffer_store_byte v2, v3, {srd(R_DBG)}, 0 offen sc1")
    A("s_mov_b64 exec, -1")
    A("v_lshlrev_b32 v1, 2, v0")
    poll("L_poll1", 1, 1, 2, 3, sCNT, sMSK)
    LBL("L_aux_w1")
    A("s_barrier")
    sHKV, sB, sH = 4, 5, 6
    A(f"s_lshr_b32 s{sHKV}, s2, 5")
    A(f"s_bfe_u32 s{sB}, s2, 0x10004")
    A(f"s_and_b32 s{sH}, s2, 31")
    A("s_cmp_ge_u32 s3, 2")
    A("s_cbranch_scc1 L_aux_hg")
    C("q gather (waves 0,1)")
    A("s_lshl_b32 s88, s3, 6")
    A("v_add_u32 v1, s88, v0")
    A("v_lshlrev_b32 v2, 4, v1")
    A(f"s_lshl_b32 s88, s{sB}, 14")
    A(f"s_lshl_b32 s89, s{sHKV}, 11")
    A("s_add_u32 s88, s88, s89")
    A(f"s_add_u32 s88, s88, {QP}")
    for ks in range(4):
        A(f"buffer_load_dwordx4 {vr(64+4*ks,4)}, v2, {srd(R_WS)}, s88 offen sc1")
        if ks < 3:
            A("s_add_u32 s88, s88, 32768")
    A("s_waitcnt vmcnt(0)")
    for i in range(4):
        A(f"v_add_f32 v{64+i}, v{64+i}, v{68+i}")
        A(f"v_add_f32 v{72+i}, v{72+i}, v{76+i}")
        A(f"v_add_f32 v{64+i}, v{64+i}, v{72+i}")
    A("v_cvt_pk_bf16_f32 v4, v64, v65")
    A("v_cvt_pk_bf16_f32 v5, v66, v67")
    A("v_lshlrev_b32 v3, 3, v1")
    A(f"v_add_u32 v3, {L_Q}, v3")
    A("ds_write_b64 v3, v[4:5]")
    A("s_waitcnt lgkmcnt(0)")
    A("s_branch L_aux_g_done")
    LBL("L_aux_hg")
    C("FFN h gather (waves 2,3): b' = wave-2, lanes 0..13 carry 4 columns each")
    A("v_cmp_gt_u32 vcc, 16, v0")
    A("s_and_saveexec_b64 s[90:91], vcc")
    A("v_min_u32 v1, 13, v0")
    A("v_lshlrev_b32 v2, 4, v1")
    A("s_sub_u32 s89, s3, 2")
    A("s_mul_i32 s88, s89, 14336")
    A(f"s_mul_i32 s92, s{sH}, 224")
    A("s_add_u32 s88, s88, s92")
    A(f"s_add_u32 s88, s88, {GP}")
    for ks in range(8):
        A(f"buffer_load_dwordx4 {vr(64+8*ks,4)}, v2, {srd(R_WS)}, s88 offen sc1")
        A("s_add_u32 s92, s88, 7168")
        A(f"buffer_load_dwordx4 {vr(64+8*ks+4,4)}, v2, {srd(R_WS)}, s92 offen sc1")
        if ks < 7:
            A("s_add_u32 s88, s88, 28672")
    A("s_waitcnt vmcnt(0)")
    for ks in range(1, 8):
        for i in range(8):
            A(f"v_add_f32 v{64+i}, v{64+i}, v{64+8*ks+i}")
    for i in range(0, 8, 2):
        round_bf16_pair(64 + i, 65 + i, 42)
    A("s_mov_b32 s88, 0xbfb8aa3b")
    for i in range(4):
        A(f"v_mul_f32 v72, s88, v{64+i}")
        A("v_exp_f32 v72, v72")
        A("s_nop 0")
        A("v_add_f32 v72, 1.0, v72")
        A("v_rcp_f32 v73, v72")
        A("s_nop 0")
        A(f"v_mul_f32 v74, v{64+i}, v73")
        A(f"v_fma_f32 v75, -v74, v72, v{64+i}")
        A("v_fmac_f32 v74, v75, v73")
        A(f"v_mov_b32 v{64+i}, v74")
    round_bf16_pair(64, 65, 42)
    round_bf16_pair(66, 67, 42)
    for i in range(4):
        A(f"v_mul_f32 v{64+i}, v{64+i}, v{68+i}")
    round_bf16_pair(64, 65, 42)
    round_bf16_pair(66, 67, 42)
    A("v_cmp_gt_u32 vcc, 14, v0")
    A("s_nop 1")
    for i in range(4):
        A(f"v_cndmask_b32 v{64+i}, 0, v{64+i}, vcc")
    A("v_lshlrev_b32 v3, 5, v0")
    A("s_lshl_b32 s88, s89, 2")
    A(f"s_add_u32 s88, s88, {L_H}")
    A("v_add_u32 v3, s88, v3")
    for i in range(4):
        A(f"ds_write_b32 v3, v{64+i} offset:{8*i}")
    A("s_waitcnt lgkmcnt(0)")
    A("s_mov_b64 exec, s[90:91]")
    LBL("L_aux_g_done")
    A("s_barrier")
    C("issue wo / w_down tile loads")
    VWO = 64
    VWD = 80
    A("v_lshlrev_b32 v12, 10, v10")
    A("v_lshl_add_u32 v12, v11, 4, v12")
    A(f"s_lshl_b32 s88, s{sH}, 17")
    A("s_lshl_b32 s89, s3, 15")
    A("s_add_u32 s88, s88, s89")
    A(f"s_lshl_b32 s89, s{sHKV}, 7")
    A("s_add_u32 s88, s88, s89")
    for t in range(4):
        A(f"buffer_load_dwordx4 {vr(VWO+4*t,4)}, v12, {srd(R_WO)}, s88 offen")
        if t < 3:
            A("s_add_u32 s88, s88, 8192")
    A(f"s_mul_i32 s88, s{sH}, 57344")
    A("s_add_u32 s88, s88, s89")
    A("s_lshl_b32 s92, s3, 13")
    A("s_add_u32 s88, s88, s92")
    A(f"buffer_load_dwordx4 {vr(VWD,4)}, v12, {srd(R_WD)}, s88 offen")
    A("s_add_u32 s88, s88, 32768")
    A(f"buffer_load_dwordx4 {vr(VWD+4,4)}, v12, {srd(R_WD)}, s88 offen")
    A("s_barrier")
    A("s_barrier")
    sHK2 = 7
    A(f"s_lshr_b32 s{sHK2}, s{sH}, 2")
    A("s_cmp_lg_u32 s3, 0")
    A("s_cbranch_scc1 L_aux_w2")
    A("v_and_b32 v1, 7, v0")
    A("v_lshlrev_b32 v1, 2, v1")
    A(f"s_lshl_b32 s88, s{sHK2}, 5")
    A("v_add_u32 v1, s88, v1")
    poll("L_poll2", 1, 2, 2, 3, sCNT, sMSK)
    LBL("L_aux_w2")
    A("s_barrier")
    A("s_cmp_ge_u32 s3, 2")
    A("s_cbranch_scc1 L_aux_c_done")
    C("attention combine for batch = wave (0,1)")
    A(f"s_lshl_b32 s88, s{sHK2}, 5")
    A("s_lshl_b32 s89, s3, 4")
    A("s_add_u32 s88, s88, s89")
    A("s_lshl_b32 s88, s88, 2")
    A(f"s_and_b32 s89, s{sH}, 3")
    A("s_add_u32 s88, s88, s89")
    A(f"s_mul_i32 s88, s88, {AP_REC}")
    A(f"s_add_u32 s88, s88, {AP}")
    A("v_and_b32 v1, 15, v0")
    A(f"s_mov_b32 s89, {4*AP_REC}")
    A("v_mul_lo_u32 v2, v1, s89")
    A(f"buffer_load_dwordx2 v[4:5], v2, {srd(R_WS)}, s88 offen offset:512 sc1")
    A("v_lshrrev_b32 v6, 5, v0")
    A("v_and_b32 v7, 31, v0")
    A(f"s_mov_b32 s89, {8*4*AP_REC}")
    A("v_mul_lo_u32 v8, v6, s89")
    A("v_lshl_add_u32 v8, v7, 4, v8")
    for t in range(8):
        A(f"buffer_load_dwordx4 {vr(96+4*t,4)}, v8, {srd(R_WS)}, s88 offen sc1")
        if t < 7:
            A(f"s_add_u32 s88, s88, {4*AP_REC}")
    A("s_waitcnt vmcnt(8)")
    A("v_mov_b32 v9, v4")
    row_allreduce([9], "max")
    A("v_sub_f32 v4, v4, v9")
    A("s_mov_b32 s88, 0x3fb8aa3b")
    A("v_mul_f32 v4, s88, v4")
    A("v_exp_f32 v4, v4")
    A("s_nop 0")
    A("v_mul_f32 v5, v5, v4")
    row_allreduce([5], "add")
    A("v_lshlrev_b32 v9, 5, v6")
    for t in range(8):
        A(f"v_add_u32 v{128+t}, {4*t}, v9")
    for t in range(8):
        A(f"ds_bpermute_b32 v{128+t}, v{128+t}, v4")
    A("s_waitcnt lgkmcnt(0)")
    A("s_waitcnt vmcnt(0)")
    for i in range(4):
        A(f"v_mul_f32 v{136+i}, v{96+i}, v128")
    for t in range(1, 8):
        for i in range(4):
            A(f"v_fmac_f32 v{136+i}, v{96+4*t+i}, v{128+t}")
    swap_allreduce([136, 137, 138, 139], [140, 141, 142, 143], "add", which=("32",))
    A("v_rcp_f32 v9, v5")
    A("s_nop 0")
    for i in range(4):
        A(f"v_mul_f32 v140, v{136+i}, v9")
        A(f"v_fma_f32 v141, -v140, v5, v{136+i}")
        A("v_fmac_f32 v140, v141, v9")
        A(f"v_mov_b32 v{136+i}, v140")
    round_bf16_pair(136, 137, 42)
    round_bf16_pair(138, 139, 42)
    A("v_lshlrev_b32 v3, 5, v7")
    A("s_lshl_b32 s88, s3, 2")
    A(f"s_add_u32 s88, s88, {L_O}")
    A("v_add_u32 v3, s88, v3")
    for i in range(4):
        A(f"ds_write_b32 v3, v{136+i} offset:{8*i}")
    A("s_waitcnt lgkmcnt(0)")
    LBL("L_aux_c_done")
    A("s_barrier")
    C("wo / w_down GEMV")
    A("v_lshlrev_b32 v13, 3, v10")
    A("s_lshl_b32 s88, s3, 8")
    A(f"s_add_u32 s88, s88, {L_O}")
    A("v_add_u32 v14, s88, v13")
    for t in range(4):
        A(f"ds_read_b64 {vr(20+2*t,2)}, v14 offset:{64*t}")
    A("s_lshl_b32 s88, s3, 6")
    A(f"s_add_u32 s88, s88, {L_H}")
    A("v_add_u32 v14, s88, v13")
    A("ds_read_b64 v[28:29], v14")
    A("ds_read_b64 v[30:31], v14 offset:256")
    A("s_waitcnt lgkmcnt(0)")
    A("s_waitcnt vmcnt(0)")
    def gemv(wbase, nt, xp, a0, a1):
        for t in range(nt):
            for i in range(4):
                w = wbase + 4 * t + i
                A(f"v_lshlrev_b32 v52, 16, v{w}")
                A(f"v_and_b32 v53, 0xffff0000, v{w}")
                if t == 0:
                    A(f"v_mul_f32 v{a0+2*i}, v52, v{xp}")
                    A(f"v_mul_f32 v{a0+2*i+1}, v53, v{xp}")
                    A(f"v_mul_f32 v{a1+2*i}, v52, v{xp+1}")
                    A(f"v_mul_f32 v{a1+2*i+1}, v53, v{xp+1}")
                else:
                    A(f"v_fmac_f32 v{a0+2*i}, v52, v{xp+2*t}")
                    A(f"v_fmac_f32 v{a0+2*i+1}, v53, v{xp+2*t}")
                    A(f"v_fmac_f32 v{a1+2*i}, v52, v{xp+2*t+1}")
                    A(f"v_fmac_f32 v{a1+2*i+1}, v53, v{xp+2*t+1}")
    gemv(VWO, 4, 20, 96, 104)
    gemv(VWD, 2, 28, 112, 120)
    A("s_lshl_b32 s88, s3, 3")
    A("v_add_u32 v1, s88, v10")
    A("v_lshlrev_b32 v1, 10, v1")
    A("v_lshl_add_u32 v1, v11, 5, v1")
    for q, base in enumerate((96, 104, 112, 120)):
        A(f"ds_write_b128 v1, {vr(base,4)} offset:{256*q}")
        A(f"ds_write_b128 v1, {vr(base+4,4)} offset:{256*q+16}")
    A("s_waitcnt lgkmcnt(0)")
    A("s_barrier")
    A("s_cmp_lg_u32 s3, 0")
    A("s_cbranch_scc1 L_end")
    C("wave 0: reduce 32 slots, publish, flag=3")
    A("v_lshlrev_b32 v1, 4, v0")
    for half in range(2):
        for s in range(16):
            A(f"ds_read_b128 {vr(64+4*s,4)}, v1 offset:{1024*(16*half+s)}")
        A("s_waitcnt lgkmcnt(0)")
        for s in range(16):
            for i in range(4):
                if half == 0 and s == 0:
                    A(f"v_mov_b32 v{4+i}, v{64+i}")
                else:
                    A(f"v_add_f32 v{4+i}, v{4+i}, v{64+4*s+i}")
    A("s_lshl_b32 s88, s2, 10")
    A(f"s_add_u32 s88, s88, {OP}")
    A(f"buffer_store_dwordx4 v[4:7], v1, {srd(R_WS)}, s88 offen sc1")
    A("s_waitcnt vmcnt(0)")
    A("v_mov_b32 v2, 3")
    A("v_mov_b32 v3, s2")
    A("s_mov_b64 exec, 1")
    A(f"buffer_store_byte v2, v3, {srd(R_DBG)}, 0 offen sc1")
    A("s_mov_b64 exec, -1")
    C("phase 4")
    A("s_and_b32 s88, s2, 15")
    A("s_lshl_b32 s88, s88, 3")
    A(f"s_lshl_b32 s89, s{sHKV}, 7")
    A("s_add_u32 s88, s88, s89")
    A(f"s_lshl_b32 s89, s{sB}, 10")
    A("s_add_u32 s92, s88, s89")
    A("v_mov_b32 v20, s92")
    A(f"buffer_load_dwordx2 v[22:23], v20, {srd(R_X)}, 0 offen")
    A("v_and_b32 v1, 7, v0")
    A("v_lshlrev_b32 v1, 2, v1")
    A(f"s_lshl_b32 s88, s{sHKV}, 5")
    A("v_add_u32 v1, s88, v1")
    poll("L_poll3", 1, 3, 2, 3, sCNT, sMSK)
    A("v_and_b32 v1, 31, v0")
    A("v_lshlrev_b32 v1, 10, v1")
    A("v_lshrrev_b32 v2, 5, v0")
    A("v_lshl_add_u32 v1, v2, 9, v1")
    A(f"s_lshl_b32 s88, s{sHKV}, 15")
    A(f"s_lshl_b32 s89, s{sB}, 8")
    A("s_add_u32 s88, s88, s89")
    A("s_and_b32 s89, s2, 15")
    A("s_lshl_b32 s89, s89, 4")
    A("s_add_u32 s88, s88, s89")
    A(f"s_add_u32 s88, s88, {OP}")
    A(f"buffer_load_dwordx4 v[4:7], v1, {srd(R_WS)}, s88 offen sc1")
    A("s_waitcnt vmcnt(0)")
    row_allreduce([4, 5, 6, 7], "add")
    swap_allreduce([4, 5, 6, 7], [8, 9, 10, 11], "add", which=("16",))
    round_bf16_pair(4, 5, 12)
    round_bf16_pair(6, 7, 12)
    for i in range(4):
        A(f"v_mov_b32 v{8+i}, v{4+i}")
    A("s_nop 1")
    for i in range(4):
        A(f"v_permlane32_swap_b32 v{4+i}, v{8+i}")
    A("s_nop 1")
    A("v_lshlrev_b32 v24, 16, v22")
    A("v_and_b32 v25, 0xffff0000, v22")
    A("v_lshlrev_b32 v26, 16, v23")
    A("v_and_b32 v27, 0xffff0000, v23")
    for i in range(4):
        A(f"v_add_f32 v{4+i}, v{24+i}, v{4+i}")
    round_bf16_pair(4, 5, 12)
    round_bf16_pair(6, 7, 12)
    for i in range(4):
        A(f"v_add_f32 v{4+i}, v{4+i}, v{8+i}")
    A("v_cvt_pk_bf16_f32 v12, v4, v5")
    A("v_cvt_pk_bf16_f32 v13, v6, v7")
    A("s_mov_b64 exec, 1")
    A(f"buffer_store_dwordx2 v[12:13], v20, {srd(R_OUT)}, 0 offen")
    A("s_branch L_end")

    LBL("L_stream")
    sSW, sKV, sLB = 4, 5, 6
    A(f"s_sub_u32 s{sSW}, s3, 4")
    A("s_lshr_b32 s88, s2, 5")
    A("s_bfe_u32 s89, s2, 0x10004")
    A("s_lshl_b32 s89, s89, 3")
    A("s_add_u32 s88, s88, s89")
    A(f"s_lshl_b32 s{sKV}, s88, 23")
    A("s_and_b32 s88, s2, 15")
    A("s_lshl_b32 s88, s88, 16")
    A(f"s_add_u32 s{sKV}, s{sKV}, s88")
    A(f"s_lshl_b32 s{sLB}, s{sSW}, 14")
    A(f"s_add_u32 s{sKV}, s{sKV}, s{sLB}")
    A(f"s_add_u32 s{sKV}, s{sKV}, 7340032")
    A("v_lshrrev_b32 v1, 4, v0")
    A("v_and_b32 v2, 15, v0")
    for tt in range(4):
        A(f"v_add_u32 v3, {4*tt}, v1")
        A("v_xor_b32 v3, v3, v2")
        A("v_lshlrev_b32 v3, 4, v3")
        A(f"v_lshl_add_u32 v{4+tt}, v1, 8, v3")
    for tt in range(2):
        A(f"v_add_u32 v3, {4*tt}, v1")
        A("v_lshlrev_b32 v3, 1, v3")
        A("v_xor_b32 v3, v3, v2")
        A("v_lshlrev_b32 v3, 4, v3")
        A(f"v_lshl_add_u32 v{8+tt}, v1, 8, v3")
    A(f"s_mov_b32 s88, s{sKV}")
    A(f"s_add_u32 s89, s{sLB}, {L_K}")
    for grp in range(4):
        A("s_mov_b32 m0, s89")
        A("s_nop 0")
        for tt in range(4):
            A(f"buffer_load_dwordx4 v{4+tt}, {srd(R_K)}, s88 offen offset:{1024*tt} lds")
        A("s_add_u32 s88, s88, 4096")
        A("s_add_u32 s89, s89, 4096")
    A(f"s_mov_b32 s88, s{sKV}")
    A(f"s_add_u32 s89, s{sLB}, {L_V}")
    for grp in range(4):
        A("s_mov_b32 m0, s89")
        A("s_nop 0")
        for tt in range(4):
            A(f"buffer_load_dwordx4 v{8+(tt&1)}, {srd(R_V)}, s88 offen offset:{1024*tt} lds")
        A("s_add_u32 s88, s88, 4096")
        A("s_add_u32 s89, s89, 4096")
    C("read addresses")
    for s in range(4):
        A(f"v_add_u32 v3, {4*s}, v1")
        A("v_xor_b32 v3, v3, v2")
        A("v_lshlrev_b32 v3, 4, v3")
        A("v_lshl_add_u32 v3, v2, 8, v3")
        A(f"v_add_u32 v{10+s}, s{sLB}, v3")
        if L_K:
            A(f"v_add_u32 v{10+s}, {L_K}, v{10+s}")
    A("v_bfe_u32 v14, v0, 2, 2")
    A("v_and_b32 v15, 3, v0")
    A("v_lshl_add_u32 v16, v1, 2, v14")
    A("v_and_b32 v17, 7, v16")
    A("v_lshlrev_b32 v16, 8, v16")
    A("v_lshl_add_u32 v16, v15, 3, v16")
    A(f"v_add_u32 v16, s{sLB}, v16")
    A(f"v_add_u32 v16, {L_V}, v16")
    for nt in range(8):
        A(f"v_xor_b32 v3, {nt}, v17")
        A(f"v_lshl_add_u32 v{20+nt}, v3, 5, v16")
    A("v_and_b32 v3, 3, v2")
    A("v_lshlrev_b32 v3, 8, v3")
    A("v_lshl_add_u32 v3, v1, 4, v3")
    A(f"v_add_u32 v18, {L_Q}, v3")
    for k in range(4):
        A("s_barrier")
    QF = 32
    for s in range(4):
        A(f"ds_read_b128 {vr(QF+4*s,4)}, v18 offset:{64*s}")
    A("s_waitcnt vmcnt(16)")
    KF = 64
    for T in range(4):
        for s in range(4):
            A(f"ds_read_b128 {vr(KF+16*T+4*s,4)}, v{10+s} offset:{4096*T}")
    SS = 48
    for T in range(4):
        A(f"s_waitcnt lgkmcnt({12-4*T})")
        for s in range(4):
            src = "0" if s == 0 else vr(SS + 4 * T, 4)
            A(f"v_mfma_f32_16x16x32_bf16 {vr(SS+4*T,4)}, {vr(KF+16*T+4*s,4)}, {vr(QF+4*s,4)}, {src}")
    A("s_nop 7")
    A("s_nop 3")
    C("softmax")
    A("s_mov_b32 s88, 0x3db504f3")
    for j in range(0, 16, 2):
        round_bf16_pair(SS + j, SS + j + 1, 3)
        A(f"v_mul_f32 v{SS+j}, s88, v{SS+j}")
        A(f"v_mul_f32 v{SS+j+1}, s88, v{SS+j+1}")
        round_bf16_pair(SS + j, SS + j + 1, 3)
    A(f"v_max3_f32 v28, v{SS}, v{SS+1}, v{SS+2}")
    for j in range(3, 15, 2):
        A(f"v_max3_f32 v28, v28, v{SS+j}, v{SS+j+1}")
    A(f"v_max_f32 v28, v28, v{SS+15}")
    swap_allreduce([28], [29], "max")
    A("s_mov_b32 s88, 0x3fb8aa3b")
    for j in range(16):
        A(f"v_sub_f32 v{SS+j}, v{SS+j}, v28")
        A(f"v_mul_f32 v{SS+j}, s88, v{SS+j}")
        A(f"v_exp_f32 v{SS+j}, v{SS+j}")
    A("s_nop 0")
    A(f"v_add_f32 v29, v{SS}, v{SS+1}")
    for j in range(2, 16):
        A(f"v_add_f32 v29, v29, v{SS+j}")
    swap_allreduce([29], [30], "add")
    PP = 32
    for j in range(8):
        A(f"v_cvt_pk_bf16_f32 v{PP+j}, v{SS+2*j}, v{SS+2*j+1}")
    C("PV")
    A("s_waitcnt vmcnt(0)")
    VF = 64
    for u in range(2):
        for nt in range(8):
            base = VF + 32 * u + 4 * nt
            A(f"ds_read_b64_tr_b16 {vr(base,2)}, v{20+nt} offset:{8192*u}")
            A(f"ds_read_b64_tr_b16 {vr(base+2,2)}, v{20+nt} offset:{8192*u+4096}")
    OA = 128
    for u in range(2):
        A(f"s_waitcnt lgkmcnt({0 if u else 15})")
        if u == 0:
            A("s_waitcnt lgkmcnt(15)")
        for nt in range(8):
            if u == 0:
                pass
            src = "0" if u == 0 else vr(OA + 4 * nt, 4)
            A(f"v_mfma_f32_16x16x32_bf16 {vr(OA+4*nt,4)}, {vr(PP+4*u,4)}, {vr(VF+32*u+4*nt,4)}, {src}")
    A("s_nop 7")
    A("s_nop 3")
    C("write wave partial to own K region")
    A("v_lshlrev_b32 v3, 2, v0")
    A(f"v_add_u32 v3, s{sLB}, v3")
    if L_K:
        A(f"v_add_u32 v3, {L_K}, v3")
    A("v_cmp_gt_u32 vcc, 16, v0")
    A("s_and_saveexec_b64 s[90:91], vcc")
    for nt in range(8):
        for r in range(4):
            A(f"ds_write_b32 v3, v{OA+4*nt+r} offset:{(r*128+nt*16)*4}")
    A("s_mov_b64 exec, 15")
    A("ds_write_b32 v3, v28 offset:2048")
    A("ds_write_b32 v3, v29 offset:2064")
    A("s_mov_b64 exec, s[90:91]")
    A("s_waitcnt lgkmcnt(0)")
    A("s_barrier")
    C("combine 4 waves: this wave handles head hh = sw")
    A(f"s_lshl_b32 s88, s{sSW}, 9")
    A("v_lshlrev_b32 v3, 3, v0")
    A("v_add_u32 v3, s88, v3")
    A(f"s_lshl_b32 s88, s{sSW}, 2")
    A("v_mov_b32 v4, s88")
    for wv in range(4):
        A(f"ds_read_b64 {vr(40+2*wv,2)}, v3 offset:{L_K+16384*wv}")
        A(f"ds_read_b32 v{50+wv}, v4 offset:{L_K+16384*wv+2048}")
        A(f"ds_read_b32 v{54+wv}, v4 offset:{L_K+16384*wv+2064}")
    A("s_waitcnt lgkmcnt(0)")
    A("v_max3_f32 v58, v50, v51, v52")
    A("v_max_f32 v58, v58, v53")
    A("s_mov_b32 s88, 0x3fb8aa3b")
    for wv in range(4):
        A(f"v_sub_f32 v{50+wv}, v{50+wv}, v58")
        A(f"v_mul_f32 v{50+wv}, s88, v{50+wv}")
        A(f"v_exp_f32 v{50+wv}, v{50+wv}")
    A("s_nop 0")
    A("v_mul_f32 v60, v40, v50")
    A("v_mul_f32 v61, v41, v50")
    A("v_mul_f32 v59, v54, v50")
    for wv in range(1, 4):
        A(f"v_fmac_f32 v60, v{40+2*wv}, v{50+wv}")
        A(f"v_fmac_f32 v61, v{41+2*wv}, v{50+wv}")
        A(f"v_fmac_f32 v59, v{54+wv}, v{50+wv}")
    A("s_lshl_b32 s88, s2, 2")
    A(f"s_add_u32 s88, s88, s{sSW}")
    A(f"s_mul_i32 s88, s88, {AP_REC}")
    A(f"s_add_u32 s88, s88, {AP}")
    A("v_lshlrev_b32 v3, 3, v0")
    A(f"buffer_store_dwordx2 v[60:61], v3, {srd(R_WS)}, s88 offen sc1")
    A("s_mov_b64 exec, 1")
    A(f"buffer_store_dwordx2 v[58:59], v3, {srd(R_WS)}, s88 offen offset:512 sc1")
    A("s_mov_b64 exec, -1")
    A("s_waitcnt vmcnt(0)")
    A("s_barrier")
    A("s_cmp_lg_u32 s3, 4")
    A("s_cbranch_scc1 L_end")
    A("v_mov_b32 v2, 2")
    A("v_mov_b32 v3, s2")
    A("s_mov_b64 exec, 1")
    A(f"buffer_store_byte v2, v3, {srd(R_DBG)}, 0 offen sc1")
    LBL("L_end")
    A("s_endpgm")
    out.append('.section .rodata,"a"')
    out.append(".p2align 6")
    out.append(f".amdhsa_kernel {NAME}_kernel")
    out.append("  .amdhsa_next_free_vgpr 160")
    out.append("  .amdhsa_next_free_sgpr 96")
    out.append("  .amdhsa_accum_offset 160")
    out.append("  .amdhsa_group_segment_fixed_size 0")
    out.append("  .amdhsa_kernarg_size 96")
    out.append("  .amdhsa_user_sgpr_count 2")
    out.append("  .amdhsa_user_sgpr_kernarg_segment_ptr 1")
    out.append("  .amdhsa_system_sgpr_workgroup_id_x 1")
    out.append(".end_amdhsa_kernel")


gen()
dst = sys.argv[1] if len(sys.argv) > 1 else "cdna_kernels/" + NAME + ".s"
open(dst, "w").write("\n".join(out) + "\n")
print("wrote", dst, len(out), "lines")
```

```python
import sys, os

NAME = "parallel_sum__sliding_block_cached__swiglu_ffn__decode"
PROF = int(os.environ.get("PROF", "0"))
NT = " nt" if int(os.environ.get("NT", "1")) else ""
DEPTH = int(os.environ.get("DEPTH", "8"))
SLEEP = int(os.environ.get("SLEEP", "1"))
HEAD = int(os.environ.get("HEAD", "0"))

QP = 0
GP = 262144
AP = GP + 8 * 2 * 2 * 1792 * 4
AP_REC = 528
OP = AP + 256 * 4 * AP_REC
OPA = OP
OPB = OP + 131072
WS_SIZE = OP + 256 * 1024
STAMP = WS_SIZE
WS_SIZE_ALL = (STAMP + 256 * 2 * 128) if PROF else WS_SIZE

L_K = 0
L_V = 65536
L_XN = 131072
L_SLOT = L_XN + 4096
L_Q = L_SLOT + 16384
L_O = L_Q + 1024
L_NONCE = L_O + 512
L_FLAGS = L_NONCE + 16
L_END = L_NONCE + 64
L_WT = L_SLOT
NPRE = int(os.environ.get("NPRE", "8"))

LIMIT = 400000
out = []


def A(s):
    out.append("    " + s)


def LBL(s):
    out.append(s + ":")


def C(s):
    out.append("    ; " + s)


P_X, P_K, P_V, P_WQ, P_WO, P_BX, P_WG, P_WU = 16, 18, 20, 22, 24, 26, 28, 30
P_WD, P_OUT, P_DBG, P_WS = 32, 34, 36, 38
R_X, R_K, R_V, R_WQ, R_WO, R_WG, R_WU, R_WD, R_OUT, R_DBG, R_WS, R_T = (
    40, 44, 48, 52, 56, 60, 64, 68, 72, 76, 80, 84)
S_NB = 16
V_FF = 15


def srd(r):
    return f"s[{r}:{r+3}]"


def build_srd(dst, ptr, size):
    A(f"s_mov_b32 s{dst}, s{ptr}")
    A(f"s_and_b32 s{dst+1}, s{ptr+1}, 0xffff")
    A(f"s_mov_b32 s{dst+2}, {size}")
    A(f"s_mov_b32 s{dst+3}, 0x20000")


def vr(i, n):
    return f"v[{i}:{i+n-1}]"


DPP_STEPS = ["quad_perm:[1,0,3,2]", "quad_perm:[2,3,0,1]", "row_half_mirror", "row_mirror"]


def row_allreduce(regs, op):
    for st in DPP_STEPS:
        A("s_nop 1")
        for r in regs:
            A(f"v_{op}_f32_dpp v{r}, v{r}, v{r} {st} row_mask:0xf bank_mask:0xf")


def swap_allreduce(regs, tmps, op, which=("16", "32")):
    for wch in which:
        for r, t in zip(regs, tmps):
            A(f"v_mov_b32 v{t}, v{r}")
        A("s_nop 1")
        for r, t in zip(regs, tmps):
            A(f"v_permlane{wch}_swap_b32 v{r}, v{t}")
        A("s_nop 1")
        for r, t in zip(regs, tmps):
            A(f"v_{op}_f32 v{r}, v{r}, v{t}")


def wave_allreduce(regs, tmps, op):
    row_allreduce(regs, op)
    swap_allreduce(regs, tmps, op)


def round_bf16_pair(a, b, t):
    A(f"v_cvt_pk_bf16_f32 v{t}, v{a}, v{b}")
    A(f"v_lshlrev_b32 v{a}, 16, v{t}")
    A(f"v_and_b32 v{b}, 0xffff0000, v{t}")


def stamp(idx):
    if not PROF:
        return
    A("s_memrealtime s[94:95]")
    A("s_waitcnt lgkmcnt(0)")
    A(f"v_mov_b32 v{200+idx}, s94")


def stamp_store(role, n):
    if not PROF:
        return
    A("s_mov_b64 exec, 1")
    A("s_lshl_b32 s94, s2, 8")
    A(f"s_add_u32 s94, s94, {STAMP + role*128}")
    A("v_mov_b32 v199, 0")
    for i in range(n):
        A(f"buffer_store_dword v{200+i}, v199, {srd(R_WS)}, s94 offen offset:{4*i}")
    A("s_waitcnt vmcnt(0)")


def tag_pack(base):
    for i in range(4):
        A(f"v_bfi_b32 v{base+i}, v{V_FF}, s{S_NB+i}, v{base+i}")


def tag_check(bases, bad, t0, t1):
    first = True
    for b in bases:
        for i in range(0, 4, 2):
            A(f"v_xor_b32 v{t0}, s{S_NB+i}, v{b+i}")
            A(f"v_xor_b32 v{t1}, s{S_NB+i+1}, v{b+i+1}")
            if first:
                A(f"v_or_b32 v{bad}, v{t0}, v{t1}")
                first = False
            else:
                A(f"v_or3_b32 v{bad}, v{bad}, v{t0}, v{t1}")
    A(f"v_and_b32 v{bad}, 0xff, v{bad}")


def tag_strip(bases):
    for b in bases:
        for i in range(4):
            A(f"v_and_b32 v{b+i}, 0xffffff00, v{b+i}")


def retry_tail(label, bad, scnt):
    A(f"v_cmp_ne_u32 vcc, 0, v{bad}")
    A("s_nop 4")
    A(f"s_cbranch_vccz {label}_ok")
    A(f"s_sleep {SLEEP}")
    A(f"s_add_u32 s{scnt}, s{scnt}, 1")
    A(f"s_cmp_lt_u32 s{scnt}, {LIMIT}")
    A(f"s_cbranch_scc1 {label}")
    LBL(label + "_ok")


def gen():
    hdr = open("cdna_kernels/" + NAME + ".s.ref").read().split("\n")
    for ln in hdr:
        if ln.startswith("; @launch"):
            break
        out.append(ln)
    out.append(f"; @launch grid=(256,1,1) block=(512,1,1) lds={L_END}")
    out.append('.amdgcn_target "amdgcn-amd-amdhsa--gfx950"')
    out.append(".text")
    out.append(f".globl {NAME}_kernel")
    out.append(".p2align 8")
    out.append(f".type {NAME}_kernel,@function")
    LBL(f"{NAME}_kernel")

    A("s_cmp_ge_u32 s2, 256")
    A("s_cbranch_scc1 L_end")
    A("s_load_dwordx16 s[16:31], s[0:1], 0")
    A("s_load_dwordx8 s[32:39], s[0:1], 64")
    A("s_memrealtime s[92:93]")
    A("v_lshrrev_b32 v1, 6, v0")
    A("v_and_b32 v0, 63, v0")
    A(f"v_mov_b32 v{V_FF}, 0xff")
    A("v_readfirstlane_b32 s3, v1")
    A("s_waitcnt lgkmcnt(0)")
    build_srd(R_K, P_K, 134217728)
    build_srd(R_V, P_V, 134217728)
    build_srd(R_WS, P_WS, WS_SIZE_ALL)
    C("clear the nonce mailbox, then an immediate barrier")
    A("v_mov_b32 v16, 0")
    A(f"v_mov_b32 v17, {L_NONCE}")
    A("ds_write_b32 v17, v16")
    A("s_waitcnt lgkmcnt(0)")
    A("s_barrier")
    A("s_cmp_ge_u32 s3, 4")
    A("s_cbranch_scc1 L_stream")
    build_srd(R_X, P_X, 2048)
    build_srd(R_WQ, P_WQ, 4194304)
    build_srd(R_WO, P_WO, 4194304)
    build_srd(R_WG, P_WG, 1835008)
    build_srd(R_WU, P_WU, 1835008)
    build_srd(R_WD, P_WD, 1835008)
    build_srd(R_OUT, P_OUT, 2048)
    build_srd(R_DBG, P_DBG, 256)

    def read_nonce(lbl):
        A(f"v_mov_b32 v17, {L_NONCE}")
        A("s_mov_b32 s93, 0")
        LBL(lbl)
        A("ds_read_b32 v16, v17")
        A("s_waitcnt lgkmcnt(0)")
        A("v_readfirstlane_b32 s92, v16")
        A("s_add_u32 s93, s93, 1")
        A("s_cmp_lg_u32 s92, 0")
        A(f"s_cbranch_scc1 {lbl}_ok")
        A(f"s_cmp_lt_u32 s93, {LIMIT*8}")
        A(f"s_cbranch_scc1 {lbl}")
        LBL(lbl + "_ok")
        for i in range(4):
            A(f"s_bfe_u32 s{S_NB+i}, s92, {(8 << 16) | (8*i)}")

    LBL("L_aux")
    stamp(0)
    sSTR, sROW0, sCOL, sSO, sSTEP, sXB = 4, 5, 6, 7, 8, 9
    sSL0, sBSTR, sDST = 11, 12, 13
    sCNT = 14
    sT0, sT1 = 88, 89
    C("x loads")
    A("v_lshlrev_b32 v1, 4, v0")
    A(f"buffer_load_dwordx4 v[2:5], v1, {srd(R_X)}, 0 offen")
    A(f"buffer_load_dwordx4 v[6:9], v1, {srd(R_X)}, 0 offen offset:1024")
    C("wave 3 acquires the launch nonce")
    A("s_cmp_lg_u32 s3, 3")
    A("s_cbranch_scc1 L_aux_nn")
    A("v_mov_b32 v14, 0")
    A(f"s_mov_b32 s{sCNT}, 0")
    A("s_cmp_ge_u32 s2, 8")
    A("s_cbranch_scc1 L_nonce")
    A("s_or_b32 s92, s92, 1")
    A("v_mov_b32 v16, s92")
    A("v_mov_b32 v17, 0")
    A("s_mov_b64 exec, 1")
    A(f"buffer_atomic_cmpswap v[16:17], v14, {srd(R_DBG)}, 0 offen sc0 sc1")
    A("s_mov_b64 exec, -1")
    A("s_waitcnt vmcnt(0)")
    A("v_readfirstlane_b32 s93, v16")
    A("s_nop 3")
    A("s_cmp_eq_u32 s93, 0")
    A("s_cselect_b32 s92, s92, s93")
    A("s_branch L_nonce_ok")
    LBL("L_nonce")
    A(f"buffer_load_dword v16, v14, {srd(R_DBG)}, 0 offen sc1")
    A("s_waitcnt vmcnt(0)")
    A("v_readfirstlane_b32 s92, v16")
    A("s_nop 3")
    A("s_cmp_lg_u32 s92, 0")
    A("s_cbranch_scc1 L_nonce_ok")
    A(f"s_add_u32 s{sCNT}, s{sCNT}, 1")
    A(f"s_cmp_lt_u32 s{sCNT}, {LIMIT}")
    A("s_cbranch_scc1 L_nonce")
    LBL("L_nonce_ok")
    A("v_mov_b32 v16, s92")
    A(f"v_mov_b32 v17, {L_NONCE}")
    A("ds_write_b32 v17, v16")
    LBL("L_aux_nn")
    C("tile parameters by wave")
    A(f"s_lshl_b32 s{sSL0}, s3, 12")
    A(f"s_add_u32 s{sSL0}, s{sSL0}, {L_SLOT}")
    A("s_cmp_ge_u32 s3, 2")
    A("s_cbranch_scc1 L_aux_gu")
    A(f"s_mov_b32 s{R_T}, s{R_WQ}")
    A(f"s_mov_b32 s{R_T+1}, s{R_WQ+1}")
    A(f"s_mov_b32 s{R_T+2}, 4194304")
    A(f"s_mov_b32 s{R_T+3}, 0x20000")
    A(f"s_mov_b32 s{sSTR}, 8192")
    A(f"s_and_b32 s{sT0}, s2, 3")
    A(f"s_lshl_b32 s{sT0}, s{sT0}, 1")
    A(f"s_add_u32 s{sT0}, s{sT0}, s3")
    A(f"s_lshl_b32 s{sROW0}, s{sT0}, 6")
    A(f"s_lshr_b32 s{sT1}, s2, 2")
    A(f"s_lshl_b32 s{sCOL}, s{sT1}, 7")
    A(f"s_mov_b32 s{sBSTR}, 16384")
    A(f"s_lshl_b32 s{sDST}, s{sT0}, 15")
    A(f"s_lshl_b32 s{sT1}, s{sT1}, 8")
    A(f"s_add_u32 s{sDST}, s{sDST}, s{sT1}")
    A(f"s_add_u32 s{sDST}, s{sDST}, {QP}")
    A("s_branch L_aux_tile")
    LBL("L_aux_gu")
    A("s_cmp_eq_u32 s3, 2")
    A(f"s_cselect_b32 s{R_T}, s{R_WG}, s{R_WU}")
    A(f"s_cselect_b32 s{R_T+1}, s{R_WG+1}, s{R_WU+1}")
    A(f"s_mov_b32 s{R_T+2}, 1835008")
    A(f"s_mov_b32 s{R_T+3}, 0x20000")
    A(f"s_mov_b32 s{sSTR}, 3584")
    A(f"s_and_b32 s{sT0}, s2, 7")
    A(f"s_lshl_b32 s{sROW0}, s{sT0}, 6")
    A(f"s_lshr_b32 s{sT1}, s2, 3")
    A(f"s_lshl_b32 s{sCOL}, s{sT1}, 7")
    A(f"s_mov_b32 s{sBSTR}, 14336")
    A(f"s_mul_i32 s{sDST}, s{sT0}, 28672")
    A(f"s_lshl_b32 s{sT1}, s{sT1}, 8")
    A(f"s_add_u32 s{sDST}, s{sDST}, s{sT1}")
    A(f"s_sub_u32 s{sT1}, s3, 2")
    A(f"s_mul_i32 s{sT1}, s{sT1}, 7168")
    A(f"s_add_u32 s{sDST}, s{sDST}, s{sT1}")
    A(f"s_add_u32 s{sDST}, s{sDST}, {GP}")
    LBL("L_aux_tile")
    VW = 64
    A("v_lshrrev_b32 v10, 3, v0")
    A("v_and_b32 v11, 7, v0")
    A(f"v_mul_lo_u32 v12, v10, s{sSTR}")
    A("v_lshl_add_u32 v12, v11, 4, v12")
    A(f"s_mul_i32 s{sSO}, s{sROW0}, s{sSTR}")
    A(f"s_add_u32 s{sSO}, s{sSO}, s{sCOL}")
    A(f"s_lshl_b32 s{sSTEP}, s{sSTR}, 3")

    def tile_loads():
        for t in range(8):
            A(f"buffer_load_dwordx4 {vr(VW+4*t,4)}, v12, {srd(R_T)}, s{sSO} offen{NT}")
            if t < 7:
                A(f"s_add_u32 s{sSO}, s{sSO}, s{sSTEP}")
    A("s_cmp_ge_u32 s3, 2")
    A("s_cbranch_scc1 L_aux_late")
    tile_loads()
    A("s_waitcnt vmcnt(8)")
    A("s_branch L_aux_ln")
    LBL("L_aux_late")
    A("s_waitcnt vmcnt(0)")
    LBL("L_aux_ln")
    C("layernorm")
    X0, X1 = 20, 28
    for i in range(4):
        A(f"v_lshlrev_b32 v{X0+2*i}, 16, v{2+i}")
        A(f"v_and_b32 v{X0+2*i+1}, 0xffff0000, v{2+i}")
        A(f"v_lshlrev_b32 v{X1+2*i}, 16, v{6+i}")
        A(f"v_and_b32 v{X1+2*i+1}, 0xffff0000, v{6+i}")
    for (X, s) in ((X0, 36), (X1, 37)):
        A(f"v_add_f32 v{s}, v{X}, v{X+1}")
        for i in range(2, 8):
            A(f"v_add_f32 v{s}, v{s}, v{X+i}")
    wave_allreduce([36, 37], [38, 39], "add")
    A("s_mov_b32 s88, 0x3b000000")
    A("v_mul_f32 v36, s88, v36")
    A("v_mul_f32 v37, s88, v37")
    for (X, m, s) in ((X0, 36, 40), (X1, 37, 41)):
        A(f"v_sub_f32 v42, v{X}, v{m}")
        A(f"v_mul_f32 v{s}, v42, v42")
        for i in range(1, 8):
            A(f"v_sub_f32 v42, v{X+i}, v{m}")
            A(f"v_fmac_f32 v{s}, v42, v42")
    wave_allreduce([40, 41], [38, 39], "add")
    A("v_mul_f32 v40, s88, v40")
    A("v_mul_f32 v41, s88, v41")
    round_bf16_pair(36, 37, 42)
    round_bf16_pair(40, 41, 42)
    A("s_mov_b32 s88, 0x3727c5ac")
    A("v_add_f32 v40, s88, v40")
    A("v_add_f32 v41, s88, v41")
    round_bf16_pair(40, 41, 42)
    A("v_sqrt_f32 v40, v40")
    A("v_sqrt_f32 v41, v41")
    A("s_nop 0")
    round_bf16_pair(40, 41, 42)
    A("v_rcp_f32 v44, v40")
    A("v_rcp_f32 v45, v41")
    XN = 48
    for i in range(8):
        A(f"v_sub_f32 v{X0+i}, v{X0+i}, v36")
        A(f"v_sub_f32 v{X1+i}, v{X1+i}, v37")
        round_bf16_pair(X0 + i, X1 + i, 42)
        for (X, sd, rc, dst) in ((X0, 40, 44, XN + 2 * i), (X1, 41, 45, XN + 2 * i + 1)):
            A(f"v_mul_f32 v{dst}, v{X+i}, v{rc}")
            A(f"v_fma_f32 v43, -v{dst}, v{sd}, v{X+i}")
            A(f"v_fmac_f32 v{dst}, v43, v{rc}")
        round_bf16_pair(XN + 2 * i, XN + 2 * i + 1, 42)
    A("v_lshlrev_b32 v1, 6, v0")
    A(f"v_add_u32 v1, {L_XN}, v1")
    for j in range(4):
        A(f"ds_write_b128 v1, {vr(XN+4*j,4)} offset:{16*j}")
    A("s_cmp_ge_u32 s3, 2")
    A("s_cbranch_scc0 L_aux_early")
    tile_loads()
    LBL("L_aux_early")
    A("s_waitcnt lgkmcnt(0)")
    A(f"s_lshl_b32 s{sXB}, s{sROW0}, 3")
    A(f"s_add_u32 s{sXB}, s{sXB}, {L_XN}")
    A("v_lshlrev_b32 v13, 3, v10")
    A(f"v_add_u32 v13, s{sXB}, v13")
    XP = 20
    for t in range(8):
        A(f"ds_read_b64 {vr(XP+2*t,2)}, v13 offset:{64*t}")
    A("s_waitcnt lgkmcnt(0)")
    AC0, AC1 = 36, 44
    for t in range(8):
        A(f"s_waitcnt vmcnt({7-t})")
        for i in range(4):
            w = VW + 4 * t + i
            A(f"v_lshlrev_b32 v52, 16, v{w}")
            A(f"v_and_b32 v53, 0xffff0000, v{w}")
            op = "v_mul_f32" if t == 0 else "v_fmac_f32"
            A(f"{op} v{AC0+2*i}, v52, v{XP+2*t}")
            A(f"{op} v{AC0+2*i+1}, v53, v{XP+2*t}")
            A(f"{op} v{AC1+2*i}, v52, v{XP+2*t+1}")
            A(f"{op} v{AC1+2*i+1}, v53, v{XP+2*t+1}")
    stamp(1)
    C("in-wave slot reduce (own 4 KiB slot area, no barrier)")
    A("v_lshlrev_b32 v1, 9, v10")
    A("v_lshl_add_u32 v1, v11, 5, v1")
    A(f"v_add_u32 v1, s{sSL0}, v1")
    A(f"ds_write_b128 v1, {vr(AC0,4)}")
    A(f"ds_write_b128 v1, {vr(AC0+4,4)} offset:16")
    A(f"ds_write_b128 v1, {vr(AC1,4)} offset:256")
    A(f"ds_write_b128 v1, {vr(AC1+4,4)} offset:272")
    A("s_waitcnt lgkmcnt(0)")
    A("v_and_b32 v2, 31, v0")
    A("v_lshrrev_b32 v3, 5, v0")
    A("v_lshlrev_b32 v1, 4, v2")
    A("v_lshl_add_u32 v1, v3, 11, v1")
    A(f"v_add_u32 v1, s{sSL0}, v1")
    for s in range(4):
        A(f"ds_read_b128 {vr(64+4*s,4)}, v1 offset:{512*s}")
    A("s_waitcnt lgkmcnt(0)")
    for i in range(4):
        A(f"v_add_f32 v{64+i}, v{64+i}, v{68+i}")
        A(f"v_add_f32 v{72+i}, v{72+i}, v{76+i}")
        A(f"v_add_f32 v{64+i}, v{64+i}, v{72+i}")
    swap_allreduce([64, 65, 66, 67], [68, 69, 70, 71], "add", which=("32",))
    read_nonce("L_rn_aux")
    C("store tagged partials")
    tag_pack(64)
    A("v_lshrrev_b32 v3, 4, v2")
    A(f"v_mul_lo_u32 v3, v3, s{sBSTR}")
    A("v_and_b32 v4, 15, v2")
    A("v_lshl_add_u32 v3, v4, 4, v3")
    A("s_cmp_ge_u32 s3, 2")
    A("s_cbranch_scc0 L_aux_st")
    A("s_cmp_ge_u32 s2, 224")
    A("s_cbranch_scc1 L_aux_st_skip")
    LBL("L_aux_st")
    A("s_mov_b32 exec_hi, 0")
    A(f"buffer_store_dwordx4 v[64:67], v3, {srd(R_WS)}, s{sDST} offen sc1")
    A("s_mov_b64 exec, -1")
    LBL("L_aux_st_skip")
    stamp(2)
    sHKV, sB, sH = 4, 5, 6
    A(f"s_lshr_b32 s{sHKV}, s2, 5")
    A(f"s_bfe_u32 s{sB}, s2, 0x10004")
    A(f"s_and_b32 s{sH}, s2, 31")
    A(f"s_mov_b32 s{sCNT}, 0")
    A("v_lshlrev_b32 v12, 10, v10")
    A("v_lshl_add_u32 v12, v11, 4, v12")
    A(f"s_lshl_b32 s89, s{sHKV}, 7")
    A("s_cmp_ge_u32 s3, 2")
    A("s_cbranch_scc1 L_aux_ffn")
    VWO = 128
    A("s_cmp_lg_u32 s3, 0")
    A("s_cbranch_scc1 L_aux_qg0")
    C("wave 0: wo tile loads (128 rows x 64 cols)")
    A(f"s_lshl_b32 s88, s{sH}, 17")
    A("s_add_u32 s88, s88, s89")
    for t in range(16):
        A(f"buffer_load_dwordx4 {vr(VWO+4*t,4)}, v12, {srd(R_WO)}, s88 offen{NT}")
        if t < 15:
            A("s_add_u32 s88, s88, 8192")
    LBL("L_aux_qg0")
    C("q gather (waves 0,1)")
    A("s_lshl_b32 s88, s3, 6")
    A("v_add_u32 v1, s88, v0")
    A("v_lshlrev_b32 v2, 4, v1")
    A(f"s_lshl_b32 s88, s{sB}, 14")
    A(f"s_lshl_b32 s89, s{sHKV}, 11")
    A("s_add_u32 s88, s88, s89")
    A(f"s_add_u32 s90, s88, {QP}")
    LBL("L_qg")
    A("s_mov_b32 s88, s90")
    for ks in range(8):
        A(f"buffer_load_dwordx4 {vr(64+4*ks,4)}, v2, {srd(R_WS)}, s88 offen sc1")
        if ks < 7:
            A("s_add_u32 s88, s88, 32768")
    A("s_waitcnt vmcnt(0)")
    tag_check([64 + 4 * k for k in range(8)], 4, 5, 6)
    retry_tail("L_qg", 4, sCNT)
    tag_strip([64 + 4 * k for k in range(8)])
    for i in range(4):
        for k in range(1, 8):
            A(f"v_add_f32 v{64+i}, v{64+i}, v{64+4*k+i}")
    A("v_cvt_pk_bf16_f32 v4, v64, v65")
    A("v_cvt_pk_bf16_f32 v5, v66, v67")
    A("v_lshlrev_b32 v3, 3, v1")
    A(f"v_add_u32 v3, {L_Q}, v3")
    A("ds_write_b64 v3, v[4:5]")
    A("s_waitcnt lgkmcnt(0)")
    stamp(3)
    A("s_barrier")
    A("s_cmp_lg_u32 s3, 0")
    A("s_cbranch_scc1 L_end")
    stamp(4)
    C("wave 0: stage wo through LDS -> MFMA B fragments")
    BF = 64
    A("v_lshlrev_b32 v1, 7, v10")
    A("v_lshl_add_u32 v1, v11, 4, v1")
    A(f"v_add_u32 v1, {L_WT}, v1")
    A("v_lshrrev_b32 v2, 4, v0")
    A("v_bfe_u32 v3, v0, 2, 2")
    A("v_lshl_add_u32 v2, v2, 3, v3")
    A("v_and_b32 v3, 3, v0")
    A("v_lshlrev_b32 v2, 7, v2")
    A("v_lshl_add_u32 v2, v3, 3, v2")
    A(f"v_add_u32 v2, {L_WT}, v2")
    for p in range(2):
        for t in range(8):
            A(f"ds_write_b128 v1, {vr(VWO+4*(8*p+t),4)} offset:{1024*t}")
        A("s_waitcnt lgkmcnt(0)")
        for sp in range(2):
            for nt in range(4):
                base = BF + 16 * (2 * p + sp) + 4 * nt
                A(f"ds_read_b64_tr_b16 {vr(base,2)}, v2 offset:{4096*sp + 32*nt}")
                A(f"ds_read_b64_tr_b16 {vr(base+2,2)}, v2 offset:{4096*sp + 512 + 32*nt}")
        A("s_waitcnt lgkmcnt(0)")
    stamp(5)
    C("attention partial gather, both batches")
    sHK2 = 7
    A(f"s_lshr_b32 s{sHK2}, s{sH}, 2")
    A(f"s_mov_b32 s{sCNT}, 0")
    A(f"s_lshl_b32 s88, s{sHK2}, 7")
    A(f"s_and_b32 s89, s{sH}, 3")
    A("s_add_u32 s88, s88, s89")
    A(f"s_mul_i32 s88, s88, {AP_REC}")
    A(f"s_add_u32 s90, s88, {AP}")
    A("v_and_b32 v1, 15, v0")
    A(f"s_mov_b32 s89, {4*AP_REC}")
    A("v_mul_lo_u32 v2, v1, s89")
    A("v_lshrrev_b32 v6, 5, v0")
    A("v_and_b32 v7, 31, v0")
    A(f"s_mov_b32 s89, {8*4*AP_REC}")
    A("v_mul_lo_u32 v8, v6, s89")
    A("v_lshl_add_u32 v8, v7, 4, v8")
    G = 128
    LBL("L_ag")
    A("s_mov_b32 s88, s90")
    for b in range(2):
        A(f"buffer_load_dwordx4 {vr(G+36*b,4)}, v2, {srd(R_WS)}, s88 offen offset:512 sc1")
        for t in range(8):
            A(f"buffer_load_dwordx4 {vr(G+36*b+4+4*t,4)}, v8, {srd(R_WS)}, s88 offen sc1")
            A(f"s_add_u32 s88, s88, {4*AP_REC}")
        if b == 0:
            A(f"s_add_u32 s88, s88, {8*4*AP_REC}")
    A("s_waitcnt vmcnt(0)")
    tag_check([G + 4 * k for k in range(18)], 4, 5, 9)
    retry_tail("L_ag", 4, sCNT)
    tag_strip([G + 4 * k for k in range(18)])
    stamp(6)
    A(f"v_mov_b32 v20, v{G}")
    A(f"v_mov_b32 v21, v{G+36}")
    row_allreduce([20, 21], "max")
    A("s_mov_b32 s88, 0x3fb8aa3b")
    for b in range(2):
        A(f"v_sub_f32 v{22+b}, v{G+36*b}, v{20+b}")
        A(f"v_mul_f32 v{22+b}, s88, v{22+b}")
        A(f"v_exp_f32 v{22+b}, v{22+b}")
    A("s_nop 0")
    for b in range(2):
        A(f"v_mul_f32 v{24+b}, v{G+36*b+1}, v{22+b}")
    row_allreduce([24, 25], "add")
    A("v_lshlrev_b32 v9, 5, v6")
    for t in range(8):
        A(f"v_add_u32 v{26+t}, {4*t}, v9")
    for b in range(2):
        for t in range(8):
            A(f"ds_bpermute_b32 v{34+8*b+t}, v{26+t}, v{22+b}")
    A("s_waitcnt lgkmcnt(0)")
    for b in range(2):
        for i in range(4):
            A(f"v_mul_f32 v{50+4*b+i}, v{G+36*b+4+i}, v{34+8*b}")
        for t in range(1, 8):
            for i in range(4):
                A(f"v_fmac_f32 v{50+4*b+i}, v{G+36*b+4+4*t+i}, v{34+8*b+t}")
    swap_allreduce(list(range(50, 58)), list(range(26, 34)), "add", which=("32",))
    A("v_rcp_f32 v20, v24")
    A("v_rcp_f32 v21, v25")
    A("s_nop 0")
    for b in range(2):
        for i in range(4):
            r = 50 + 4 * b + i
            A(f"v_mul_f32 v26, v{r}, v{20+b}")
            A(f"v_fma_f32 v27, -v26, v{24+b}, v{r}")
            A(f"v_fma_f32 v{r}, v27, v{20+b}, v26")
    for b in range(2):
        A(f"v_cvt_pk_bf16_f32 v{28+2*b}, v{50+4*b}, v{51+4*b}")
        A(f"v_cvt_pk_bf16_f32 v{29+2*b}, v{52+4*b}, v{53+4*b}")
    A("v_lshlrev_b32 v3, 3, v7")
    A(f"v_add_u32 v3, {L_O}, v3")
    A("ds_write_b64 v3, v[28:29]")
    A("ds_write_b64 v3, v[30:31] offset:256")
    A("v_and_b32 v3, 1, v0")
    A("v_lshlrev_b32 v3, 8, v3")
    A("v_lshrrev_b32 v4, 4, v0")
    A("v_lshl_add_u32 v3, v4, 4, v3")
    A(f"v_add_u32 v3, {L_O}, v3")
    A("s_waitcnt lgkmcnt(0)")
    AF = 32
    for s in range(4):
        A(f"ds_read_b128 {vr(AF+4*s,4)}, v3 offset:{64*s}")
    A("s_waitcnt lgkmcnt(0)")
    AC = 48
    for s in range(4):
        for nt in range(4):
            src = "0" if s == 0 else vr(AC + 4 * nt, 4)
            A(f"v_mfma_f32_16x16x32_bf16 {vr(AC+4*nt,4)}, {vr(AF+4*s,4)}, {vr(BF+16*s+4*nt,4)}, {src}")
    A("s_nop 7")
    A("s_nop 1")
    stamp(7)
    for b in range(2):
        for nt in range(4):
            A(f"v_mov_b32 v{4+4*b+nt}, v{AC+4*nt+b}")
    tag_pack(4)
    tag_pack(8)
    A("v_lshlrev_b32 v1, 4, v0")
    A("s_lshl_b32 s88, s2, 9")
    A(f"s_add_u32 s88, s88, {OPA}")
    A("s_mov_b64 exec, 0xffff")
    A(f"buffer_store_dwordx4 v[4:7], v1, {srd(R_WS)}, s88 offen sc1")
    A(f"buffer_store_dwordx4 v[8:11], v1, {srd(R_WS)}, s88 offen offset:256 sc1")
    A("s_mov_b64 exec, -1")
    stamp(8)
    C("phase 4: outputs b=(w>>4)&1, cols cs*64 + (w&15) + 16*nt")
    A("s_and_b32 s88, s2, 15")
    A("s_lshl_b32 s88, s88, 1")
    A(f"s_lshl_b32 s89, s{sHKV}, 7")
    A("s_add_u32 s88, s88, s89")
    A(f"s_lshl_b32 s89, s{sB}, 10")
    A("s_add_u32 s91, s88, s89")
    A("v_mov_b32 v20, s91")
    for nt in range(4):
        A(f"buffer_load_ushort v{22+nt}, v20, {srd(R_X)}, 0 offen offset:{32*nt}")
    A("v_and_b32 v1, 31, v0")
    A("v_lshlrev_b32 v1, 9, v1")
    A("v_lshrrev_b32 v2, 5, v0")
    A("v_lshl_add_u32 v1, v2, 17, v1")
    A(f"s_lshl_b32 s88, s{sHKV}, 14")
    A(f"s_lshl_b32 s89, s{sB}, 8")
    A("s_add_u32 s88, s88, s89")
    A("s_and_b32 s89, s2, 15")
    A("s_lshl_b32 s89, s89, 4")
    A("s_add_u32 s88, s88, s89")
    A(f"s_add_u32 s88, s88, {OPA}")
    A(f"s_mov_b32 s{sCNT}, 0")
    LBL("L_og")
    A(f"buffer_load_dwordx4 v[4:7], v1, {srd(R_WS)}, s88 offen sc1")
    A("s_waitcnt vmcnt(0)")
    tag_check([4], 8, 9, 10)
    retry_tail("L_og", 8, sCNT)
    tag_strip([4])
    stamp(9)
    row_allreduce([4, 5, 6, 7], "add")
    swap_allreduce([4, 5, 6, 7], [8, 9, 10, 11], "add", which=("16",))
    round_bf16_pair(4, 5, 12)
    round_bf16_pair(6, 7, 12)
    for i in range(4):
        A(f"v_mov_b32 v{8+i}, v{4+i}")
    A("s_nop 1")
    for i in range(4):
        A(f"v_permlane32_swap_b32 v{4+i}, v{8+i}")
    A("s_nop 1")
    for i in range(4):
        A(f"v_lshlrev_b32 v{22+i}, 16, v{22+i}")
        A(f"v_add_f32 v{4+i}, v{22+i}, v{4+i}")
    round_bf16_pair(4, 5, 12)
    round_bf16_pair(6, 7, 12)
    for i in range(4):
        A(f"v_add_f32 v{4+i}, v{4+i}, v{8+i}")
    A("v_cvt_pk_bf16_f32 v12, v4, v5")
    A("v_cvt_pk_bf16_f32 v13, v6, v7")
    A("s_mov_b64 exec, 1")
    A(f"buffer_store_short v12, v20, {srd(R_OUT)}, 0 offen")
    A(f"buffer_store_short_d16_hi v12, v20, {srd(R_OUT)}, 0 offen offset:32")
    A(f"buffer_store_short v13, v20, {srd(R_OUT)}, 0 offen offset:64")
    A(f"buffer_store_short_d16_hi v13, v20, {srd(R_OUT)}, 0 offen offset:96")
    stamp(10)
    stamp_store(0, 11)
    A("s_branch L_end")

    LBL("L_aux_ffn")
    VWD = 128
    A(f"s_mul_i32 s88, s{sH}, 57344")
    A("s_add_u32 s88, s88, s89")
    for t in range(7):
        A(f"buffer_load_dwordx4 {vr(VWD+4*t,4)}, v12, {srd(R_WD)}, s88 offen{NT}")
        if t < 6:
            A("s_add_u32 s88, s88, 8192")
    A("s_barrier")
    A("s_mov_b64 exec, 0xffff")
    A("v_min_u32 v1, 13, v0")
    A("v_lshlrev_b32 v2, 4, v1")
    A("s_sub_u32 s89, s3, 2")
    A("s_mul_i32 s88, s89, 14336")
    A(f"s_mul_i32 s91, s{sH}, 224")
    A("s_add_u32 s88, s88, s91")
    A(f"s_add_u32 s90, s88, {GP}")
    LBL("L_hg")
    A("s_mov_b32 s88, s90")
    for ks in range(8):
        A(f"buffer_load_dwordx4 {vr(64+8*ks,4)}, v2, {srd(R_WS)}, s88 offen sc1")
        A("s_add_u32 s91, s88, 7168")
        A(f"buffer_load_dwordx4 {vr(64+8*ks+4,4)}, v2, {srd(R_WS)}, s91 offen sc1")
        if ks < 7:
            A("s_add_u32 s88, s88, 28672")
    A("s_waitcnt vmcnt(0)")
    tag_check([64 + 4 * k for k in range(16)], 4, 5, 6)
    retry_tail("L_hg", 4, sCNT)
    tag_strip([64 + 4 * k for k in range(16)])
    for ks in range(1, 8):
        for i in range(8):
            A(f"v_add_f32 v{64+i}, v{64+i}, v{64+8*ks+i}")
    for i in range(0, 8, 2):
        round_bf16_pair(64 + i, 65 + i, 42)
    A("s_mov_b32 s88, 0xbfb8aa3b")
    for i in range(4):
        A(f"v_mul_f32 v72, s88, v{64+i}")
        A("v_exp_f32 v72, v72")
        A("s_nop 0")
        A("v_add_f32 v72, 1.0, v72")
        A("v_rcp_f32 v73, v72")
        A("s_nop 0")
        A(f"v_mul_f32 v74, v{64+i}, v73")
        A(f"v_fma_f32 v75, -v74, v72, v{64+i}")
        A("v_fmac_f32 v74, v75, v73")
        A(f"v_mov_b32 v{64+i}, v74")
    round_bf16_pair(64, 65, 42)
    round_bf16_pair(66, 67, 42)
    for i in range(4):
        A(f"v_mul_f32 v{64+i}, v{64+i}, v{68+i}")
    round_bf16_pair(64, 65, 42)
    round_bf16_pair(66, 67, 42)
    A("v_lshlrev_b32 v3, 4, v0")
    A(f"v_add_u32 v3, s{sSL0}, v3")
    A("ds_write_b128 v3, v[64:67] offset:2048")
    A("s_mov_b64 exec, -1")
    A("s_waitcnt lgkmcnt(0)")
    A("v_lshlrev_b32 v3, 2, v10")
    A(f"v_add_u32 v3, s{sSL0}, v3")
    for t in range(7):
        A(f"ds_read_b32 v{20+t}, v3 offset:{2048+32*t}")
    A("s_waitcnt lgkmcnt(0)")
    for t in range(7):
        for i in range(4):
            w = VWD + 4 * t + i
            A(f"v_lshlrev_b32 v52, 16, v{w}")
            A(f"v_and_b32 v53, 0xffff0000, v{w}")
            op = "v_mul_f32" if t == 0 else "v_fmac_f32"
            A(f"{op} v{36+2*i}, v52, v{20+t}")
            A(f"{op} v{37+2*i}, v53, v{20+t}")
    A("v_lshlrev_b32 v1, 8, v10")
    A("v_lshl_add_u32 v1, v11, 5, v1")
    A(f"v_add_u32 v1, s{sSL0}, v1")
    A("ds_write_b128 v1, v[36:39]")
    A("ds_write_b128 v1, v[40:43] offset:16")
    A("s_waitcnt lgkmcnt(0)")
    A("v_lshlrev_b32 v1, 2, v0")
    A(f"v_add_u32 v1, s{sSL0}, v1")
    for rr in range(8):
        A(f"ds_read_b32 v{20+rr}, v1 offset:{256*rr}")
    A("s_waitcnt lgkmcnt(0)")
    for rr in range(1, 8):
        A(f"v_add_f32 v20, v20, v{20+rr}")
    A("ds_write_b32 v1, v20 offset:2560")
    A("s_waitcnt lgkmcnt(0)")
    for nt in range(4):
        A(f"ds_read_b32 v{4+nt}, v1 offset:{2560+64*nt}")
    A("s_waitcnt lgkmcnt(0)")
    tag_pack(4)
    A("v_lshlrev_b32 v1, 4, v0")
    A("s_lshl_b32 s88, s2, 9")
    A("s_lshl_b32 s91, s89, 8")
    A("s_add_u32 s88, s88, s91")
    A(f"s_add_u32 s88, s88, {OPB}")
    A("s_mov_b64 exec, 0xffff")
    A(f"buffer_store_dwordx4 v[4:7], v1, {srd(R_WS)}, s88 offen sc1")
    A("s_branch L_end")

    LBL("L_stream")
    stamp(0)
    sSW, sKV, sLB = 4, 5, 6
    A(f"s_sub_u32 s{sSW}, s3, 4")
    A("s_lshr_b32 s88, s2, 5")
    A("s_bfe_u32 s89, s2, 0x10004")
    A("s_lshl_b32 s89, s89, 3")
    A("s_add_u32 s88, s88, s89")
    A(f"s_lshl_b32 s{sKV}, s88, 23")
    A("s_and_b32 s88, s2, 15")
    A("s_lshl_b32 s88, s88, 16")
    A(f"s_add_u32 s{sKV}, s{sKV}, s88")
    A(f"s_lshl_b32 s{sLB}, s{sSW}, 14")
    A(f"s_lshl_b32 s88, s{sSW}, 10")
    A(f"s_add_u32 s{sKV}, s{sKV}, s88")
    A(f"s_add_u32 s{sKV}, s{sKV}, 7340032")
    A("v_lshrrev_b32 v1, 4, v0")
    A("v_and_b32 v2, 15, v0")
    for tt in range(4):
        A(f"v_add_u32 v3, {4*tt}, v1")
        A("v_xor_b32 v3, v3, v2")
        A("v_lshlrev_b32 v3, 4, v3")
        A(f"v_lshl_add_u32 v{4+tt}, v1, 8, v3")
    for tt in range(2):
        A(f"v_add_u32 v3, {4*tt}, v1")
        A("v_lshlrev_b32 v3, 1, v3")
        A("v_xor_b32 v3, v3, v2")
        A("v_lshlrev_b32 v3, 4, v3")
        A(f"v_lshl_add_u32 v{8+tt}, v1, 8, v3")
    n_issued = 0
    for (R, LB, isV) in ((R_K, L_K, 0), (R_V, L_V, 1)):
        A(f"s_mov_b32 s88, s{sKV}")
        A(f"s_add_u32 s89, s{sLB}, {LB}")
        for t in range(16):
            A("s_mov_b32 m0, s89")
            if n_issued >= DEPTH:
                A(f"s_waitcnt vmcnt({DEPTH-1})")
            else:
                A("s_nop 0")
            vo = (8 + (t & 1)) if isV else (4 + (t & 3))
            A(f"buffer_load_dwordx4 v{vo}, {srd(R)}, s88 offen{NT} lds")
            n_issued += 1
            A("s_add_u32 s88, s88, 4096")
            A("s_add_u32 s89, s89, 1024")
    stamp(1)
    read_nonce("L_rn_str")
    C("read addresses")
    for s in range(4):
        A(f"v_add_u32 v3, {4*s}, v1")
        A("v_xor_b32 v3, v3, v2")
        A("v_lshlrev_b32 v3, 4, v3")
        A("v_lshl_add_u32 v3, v2, 8, v3")
        A(f"v_add_u32 v{10+s}, s{sLB}, v3")
    A("v_bfe_u32 v14, v0, 2, 2")
    A("v_and_b32 v19, 3, v0")
    A("v_lshl_add_u32 v16, v1, 2, v14")
    A("v_and_b32 v17, 7, v16")
    A("v_lshlrev_b32 v16, 8, v16")
    A("v_lshl_add_u32 v16, v19, 3, v16")
    A(f"v_add_u32 v16, s{sLB}, v16")
    A(f"v_add_u32 v16, {L_V}, v16")
    for nt in range(8):
        A(f"v_xor_b32 v3, {nt}, v17")
        A(f"v_lshl_add_u32 v{20+nt}, v3, 5, v16")
    A("v_and_b32 v3, 3, v2")
    A("v_lshlrev_b32 v3, 8, v3")
    A("v_lshl_add_u32 v3, v1, 4, v3")
    A(f"v_add_u32 v18, {L_Q}, v3")
    A("s_barrier")
    stamp(2)
    QF = 32
    for s in range(4):
        A(f"ds_read_b128 {vr(QF+4*s,4)}, v18 offset:{64*s}")
    A("s_waitcnt vmcnt(16)")
    stamp(3)
    KF = 64
    for T in range(4):
        for s in range(4):
            A(f"ds_read_b128 {vr(KF+16*T+4*s,4)}, v{10+s} offset:{4096*T}")
    SS = 48
    for T in range(4):
        A(f"s_waitcnt lgkmcnt({12-4*T})")
        for s in range(4):
            src = "0" if s == 0 else vr(SS + 4 * T, 4)
            A(f"v_mfma_f32_16x16x32_bf16 {vr(SS+4*T,4)}, {vr(KF+16*T+4*s,4)}, {vr(QF+4*s,4)}, {src}")
    A("s_nop 7")
    A("s_nop 1")
    C("softmax")
    A("s_mov_b32 s88, 0x3db504f3")
    for j in range(0, 16, 2):
        round_bf16_pair(SS + j, SS + j + 1, 3)
        A(f"v_mul_f32 v{SS+j}, s88, v{SS+j}")
        A(f"v_mul_f32 v{SS+j+1}, s88, v{SS+j+1}")
        round_bf16_pair(SS + j, SS + j + 1, 3)
    A(f"v_max3_f32 v28, v{SS}, v{SS+1}, v{SS+2}")
    for j in range(3, 15, 2):
        A(f"v_max3_f32 v28, v28, v{SS+j}, v{SS+j+1}")
    A(f"v_max_f32 v28, v28, v{SS+15}")
    swap_allreduce([28], [29], "max")
    A("s_mov_b32 s88, 0x3fb8aa3b")
    for j in range(16):
        A(f"v_sub_f32 v{SS+j}, v{SS+j}, v28")
        A(f"v_mul_f32 v{SS+j}, s88, v{SS+j}")
        A(f"v_exp_f32 v{SS+j}, v{SS+j}")
    A("s_nop 0")
    A(f"v_add_f32 v29, v{SS}, v{SS+1}")
    for j in range(2, 16):
        A(f"v_add_f32 v29, v29, v{SS+j}")
    swap_allreduce([29], [30], "add")
    PP = 32
    for j in range(8):
        A(f"v_cvt_pk_bf16_f32 v{PP+j}, v{SS+2*j}, v{SS+2*j+1}")
    stamp(4)
    C("PV")
    A("s_waitcnt vmcnt(0)")
    stamp(5)
    VF = 64
    for u in range(2):
        for nt in range(8):
            base = VF + 32 * u + 4 * nt
            A(f"ds_read_b64_tr_b16 {vr(base,2)}, v{20+nt} offset:{8192*u}")
            A(f"ds_read_b64_tr_b16 {vr(base+2,2)}, v{20+nt} offset:{8192*u+4096}")
    OA = 128
    for u in range(2):
        A(f"s_waitcnt lgkmcnt({0 if u else 15})")
        for nt in range(8):
            src = "0" if u == 0 else vr(OA + 4 * nt, 4)
            A(f"v_mfma_f32_16x16x32_bf16 {vr(OA+4*nt,4)}, {vr(PP+4*u,4)}, {vr(VF+32*u+4*nt,4)}, {src}")
    A("s_nop 7")
    A("s_nop 1")
    stamp(6)
    C("write wave partial to own K region, then flag")
    A("v_lshlrev_b32 v3, 2, v0")
    A(f"v_add_u32 v3, s{sLB}, v3")
    A("s_mov_b64 exec, 0xffff")
    for nt in range(8):
        for r in range(4):
            A(f"ds_write_b32 v3, v{OA+4*nt+r} offset:{(r*128+nt*16)*4}")
    A("s_mov_b64 exec, 15")
    A("ds_write_b32 v3, v28 offset:2048")
    A("ds_write_b32 v3, v29 offset:2064")
    A("s_mov_b64 exec, -1")
    A("v_mov_b32 v4, s92")
    A(f"s_lshl_b32 s88, s{sSW}, 2")
    A(f"s_add_u32 s88, s88, {L_FLAGS}")
    A("v_mov_b32 v5, s88")
    A("s_waitcnt lgkmcnt(0)")
    A("ds_write_b32 v5, v4")
    A(f"v_mov_b32 v5, {L_FLAGS}")
    A("s_mov_b32 s90, 0")
    LBL("L_sf")
    A("ds_read_b128 v[32:35], v5")
    A("s_waitcnt lgkmcnt(0)")
    A("v_xor_b32 v32, v32, v4")
    A("v_xor_b32 v33, v33, v4")
    A("v_xor_b32 v34, v34, v4")
    A("v_xor_b32 v35, v35, v4")
    A("v_or3_b32 v32, v32, v33, v34")
    A("v_or_b32 v32, v32, v35")
    A("v_cmp_ne_u32 vcc, 0, v32")
    A("s_nop 4")
    A("s_cbranch_vccz L_sf_ok")
    A("s_add_u32 s90, s90, 1")
    A(f"s_cmp_lt_u32 s90, {LIMIT*8}")
    A("s_cbranch_scc1 L_sf")
    LBL("L_sf_ok")
    C("combine 4 waves: this wave handles head hh = sw; lane -> 4 d's (dq = l&31)")
    A(f"s_lshl_b32 s88, s{sSW}, 9")
    A("v_and_b32 v5, 31, v0")
    A("v_lshlrev_b32 v3, 4, v5")
    A("v_add_u32 v3, s88, v3")
    A(f"s_lshl_b32 s88, s{sSW}, 2")
    A("v_mov_b32 v4, s88")
    for wv in range(4):
        A(f"ds_read_b128 {vr(32+4*wv,4)}, v3 offset:{L_K+16384*wv}")
        A(f"ds_read_b32 v{50+wv}, v4 offset:{L_K+16384*wv+2048}")
        A(f"ds_read_b32 v{54+wv}, v4 offset:{L_K+16384*wv+2064}")
    A("s_waitcnt lgkmcnt(0)")
    A("v_max3_f32 v58, v50, v51, v52")
    A("v_max_f32 v58, v58, v53")
    A("s_mov_b32 s88, 0x3fb8aa3b")
    for wv in range(4):
        A(f"v_sub_f32 v{50+wv}, v{50+wv}, v58")
        A(f"v_mul_f32 v{50+wv}, s88, v{50+wv}")
        A(f"v_exp_f32 v{50+wv}, v{50+wv}")
    A("s_nop 0")
    for i in range(4):
        A(f"v_mul_f32 v{60+i}, v{32+i}, v50")
    A("v_mul_f32 v59, v54, v50")
    for wv in range(1, 4):
        for i in range(4):
            A(f"v_fmac_f32 v{60+i}, v{32+4*wv+i}, v{50+wv}")
        A(f"v_fmac_f32 v59, v{54+wv}, v{50+wv}")
    A("v_cmp_gt_u32 vcc, 32, v0")
    A("v_lshlrev_b32 v3, 4, v5")
    A("s_nop 0")
    A("v_cndmask_b32 v60, v58, v60, vcc")
    A("v_cndmask_b32 v61, v59, v61, vcc")
    A("v_cndmask_b32 v62, 0, v62, vcc")
    A("v_cndmask_b32 v63, 0, v63, vcc")
    A("v_mov_b32 v4, 0x200")
    A("v_cndmask_b32 v3, v4, v3, vcc")
    tag_pack(60)
    A("s_lshl_b32 s88, s2, 2")
    A(f"s_add_u32 s88, s88, s{sSW}")
    A(f"s_mul_i32 s88, s88, {AP_REC}")
    A(f"s_add_u32 s88, s88, {AP}")
    A("s_mov_b32 exec_hi, 1")
    A(f"buffer_store_dwordx4 v[60:63], v3, {srd(R_WS)}, s88 offen sc1")
    stamp(7)
    if PROF:
        A("s_cmp_lg_u32 s3, 4")
        A("s_cbranch_scc1 L_end")
        stamp_store(1, 8)
    LBL("L_end")
    A("s_endpgm")
    nv = 240 if PROF else 200
    out.append('.section .rodata,"a"')
    out.append(".p2align 6")
    out.append(f".amdhsa_kernel {NAME}_kernel")
    out.append(f"  .amdhsa_next_free_vgpr {nv}")
    out.append("  .amdhsa_next_free_sgpr 96")
    out.append(f"  .amdhsa_accum_offset {nv}")
    out.append("  .amdhsa_group_segment_fixed_size 0")
    out.append("  .amdhsa_kernarg_size 96")
    out.append("  .amdhsa_user_sgpr_count 2")
    out.append("  .amdhsa_user_sgpr_kernarg_segment_ptr 1")
    out.append("  .amdhsa_system_sgpr_workgroup_id_x 1")
    out.append(".end_amdhsa_kernel")


gen()
txt = "\n".join(out) + "\n"
dst = sys.argv[1] if len(sys.argv) > 1 else "cdna_kernels/" + NAME + ".s"
open(dst, "w").write(txt)
print("wrote", dst, len(out), "lines", "STAMP", STAMP)
```

```python
import sys, os

NAME = "parallel_sum__sliding_block_cached__swiglu_ffn__decode"
PROF = int(os.environ.get("PROF", "0"))
NT = " nt" if int(os.environ.get("NT", "1")) else ""
DEPTH = int(os.environ.get("DEPTH", "8"))
SLEEP = int(os.environ.get("SLEEP", "1"))
HEAD = int(os.environ.get("HEAD", "0"))

QP = 0
GP = 262144
AP = GP + 8 * 2 * 2 * 1792 * 4
AP_REC = 528
OP = AP + 256 * 4 * AP_REC
OPA = OP
OPB = OP + 131072
WS_SIZE = OP + 256 * 1024
STAMP = WS_SIZE
WS_SIZE_ALL = (STAMP + 256 * 2 * 128) if PROF else WS_SIZE

L_K = 0
L_V = 65536
L_XN = 131072
L_SLOT = L_XN + 4096
L_Q = L_SLOT + 16384
L_O = L_Q + 1024
L_NONCE = L_O + 512
L_FLAGS = L_NONCE + 16
L_END = L_NONCE + 64
L_WT = L_SLOT
NPRE = int(os.environ.get("NPRE", "8"))

LIMIT = 400000
out = []


def A(s):
    out.append("    " + s)


def LBL(s):
    out.append(s + ":")


def C(s):
    out.append("    ; " + s)


P_X, P_K, P_V, P_WQ, P_WO, P_BX, P_WG, P_WU = 16, 18, 20, 22, 24, 26, 28, 30
P_WD, P_OUT, P_DBG, P_WS = 32, 34, 36, 38
R_X, R_K, R_V, R_WQ, R_WO, R_WG, R_WU, R_WD, R_OUT, R_DBG, R_WS, R_T = (
    40, 44, 48, 52, 56, 60, 64, 68, 72, 76, 80, 84)
S_NB = 16
V_FF = 15


def srd(r):
    return f"s[{r}:{r+3}]"


def build_srd(dst, ptr, size):
    A(f"s_mov_b32 s{dst}, s{ptr}")
    A(f"s_and_b32 s{dst+1}, s{ptr+1}, 0xffff")
    A(f"s_mov_b32 s{dst+2}, {size}")
    A(f"s_mov_b32 s{dst+3}, 0x20000")


def vr(i, n):
    return f"v[{i}:{i+n-1}]"


DPP_STEPS = ["quad_perm:[1,0,3,2]", "quad_perm:[2,3,0,1]", "row_half_mirror", "row_mirror"]


def row_allreduce(regs, op):
    for st in DPP_STEPS:
        A("s_nop 1")
        for r in regs:
            A(f"v_{op}_f32_dpp v{r}, v{r}, v{r} {st} row_mask:0xf bank_mask:0xf")


def swap_allreduce(regs, tmps, op, which=("16", "32")):
    for wch in which:
        for r, t in zip(regs, tmps):
            A(f"v_mov_b32 v{t}, v{r}")
        A("s_nop 1")
        for r, t in zip(regs, tmps):
            A(f"v_permlane{wch}_swap_b32 v{r}, v{t}")
        A("s_nop 1")
        for r, t in zip(regs, tmps):
            A(f"v_{op}_f32 v{r}, v{r}, v{t}")


def wave_allreduce(regs, tmps, op):
    row_allreduce(regs, op)
    swap_allreduce(regs, tmps, op)


def round_bf16_pair(a, b, t):
    A(f"v_cvt_pk_bf16_f32 v{t}, v{a}, v{b}")
    A(f"v_lshlrev_b32 v{a}, 16, v{t}")
    A(f"v_and_b32 v{b}, 0xffff0000, v{t}")


def stamp(idx):
    if not PROF:
        return
    A("s_memrealtime s[94:95]")
    A("s_waitcnt lgkmcnt(0)")
    A(f"v_mov_b32 v{200+idx}, s94")


DBGST = int(os.environ.get("DBGST", "0"))


def stamp_store(role, n):
    if not PROF:
        return
    if DBGST:
        A(f"s_cmp_lg_u32 s2, {DBGST}")
        A(f"s_cbranch_scc1 L_end")
        A(f"s_mov_b32 s{R_DBG}, s{P_DBG}")
        A(f"s_and_b32 s{R_DBG+1}, s{P_DBG+1}, 0xffff")
        A(f"s_mov_b32 s{R_DBG+2}, 256")
        A(f"s_mov_b32 s{R_DBG+3}, 0x20000")
        A("s_mov_b64 exec, 1")
        A("v_mov_b32 v199, 0")
        idx = list(range(1, 11)) if role == 0 else [1, 2, 5, 6, 7]
        base = 1 if role == 0 else 11
        for j, i in enumerate(idx):
            A(f"v_sub_u32 v{200+i}, v{200+i}, v200")
            A(f"buffer_store_dword v{200+i}, v199, {srd(R_DBG)}, 0 offen offset:{4*(base+j)}")
        A("s_waitcnt vmcnt(0)")
        return
    A("s_mov_b64 exec, 1")
    A("s_lshl_b32 s94, s2, 8")
    A(f"s_add_u32 s94, s94, {STAMP + role*128}")
    A("v_mov_b32 v199, 0")
    for i in range(n):
        A(f"buffer_store_dword v{200+i}, v199, {srd(R_WS)}, s94 offen offset:{4*i}")
    A("s_waitcnt vmcnt(0)")


def tag_pack(base):
    for i in range(4):
        A(f"v_bfi_b32 v{base+i}, v{V_FF}, s{S_NB+i}, v{base+i}")


def tag_check(bases, bad, t0, t1):
    first = True
    for b in bases:
        for i in range(0, 4, 2):
            A(f"v_xor_b32 v{t0}, s{S_NB+i}, v{b+i}")
            A(f"v_xor_b32 v{t1}, s{S_NB+i+1}, v{b+i+1}")
            if first:
                A(f"v_or_b32 v{bad}, v{t0}, v{t1}")
                first = False
            else:
                A(f"v_or3_b32 v{bad}, v{bad}, v{t0}, v{t1}")
    A(f"v_and_b32 v{bad}, 0xff, v{bad}")


def tag_strip(bases):
    for b in bases:
        for i in range(4):
            A(f"v_and_b32 v{b+i}, 0xffffff00, v{b+i}")


def retry_tail(label, bad, scnt):
    A(f"v_cmp_ne_u32 vcc, 0, v{bad}")
    A("s_nop 4")
    A(f"s_cbranch_vccz {label}_ok")
    A(f"s_sleep {SLEEP}")
    A(f"s_add_u32 s{scnt}, s{scnt}, 1")
    A(f"s_cmp_lt_u32 s{scnt}, {LIMIT}")
    A(f"s_cbranch_scc1 {label}")
    LBL(label + "_ok")


def gen():
    hdr = open("cdna_kernels/" + NAME + ".s.ref").read().split("\n")
    for ln in hdr:
        if ln.startswith("; @launch"):
            break
        out.append(ln)
    out.append(f"; @launch grid=(256,1,1) block=(512,1,1) lds={L_END}")
    out.append('.amdgcn_target "amdgcn-amd-amdhsa--gfx950"')
    out.append(".text")
    out.append(f".globl {NAME}_kernel")
    out.append(".p2align 8")
    out.append(f".type {NAME}_kernel,@function")
    LBL(f"{NAME}_kernel")

    A("s_cmp_ge_u32 s2, 256")
    A("s_cbranch_scc1 L_end")
    A("s_load_dwordx16 s[16:31], s[0:1], 0")
    A("s_load_dwordx8 s[32:39], s[0:1], 64")
    A("s_memrealtime s[92:93]")
    A("v_lshrrev_b32 v1, 6, v0")
    A("v_and_b32 v0, 63, v0")
    A(f"v_mov_b32 v{V_FF}, 0xff")
    A("v_readfirstlane_b32 s3, v1")
    A("s_waitcnt lgkmcnt(0)")
    build_srd(R_K, P_K, 134217728)
    build_srd(R_V, P_V, 134217728)
    build_srd(R_WS, P_WS, WS_SIZE_ALL)
    C("clear the nonce mailbox, then an immediate barrier")
    A("v_mov_b32 v16, 0")
    A(f"v_mov_b32 v17, {L_NONCE}")
    A("ds_write_b32 v17, v16")
    A("s_waitcnt lgkmcnt(0)")
    A("s_barrier")
    A("s_cmp_ge_u32 s3, 4")
    A("s_cbranch_scc1 L_stream")
    build_srd(R_X, P_X, 2048)
    build_srd(R_WQ, P_WQ, 4194304)
    build_srd(R_WO, P_WO, 4194304)
    build_srd(R_WG, P_WG, 1835008)
    build_srd(R_WU, P_WU, 1835008)
    build_srd(R_WD, P_WD, 1835008)
    build_srd(R_OUT, P_OUT, 2048)
    build_srd(R_DBG, P_DBG, 256)

    def read_nonce(lbl):
        A(f"v_mov_b32 v17, {L_NONCE}")
        A("s_mov_b32 s93, 0")
        LBL(lbl)
        A("ds_read_b32 v16, v17")
        A("s_waitcnt lgkmcnt(0)")
        A("v_readfirstlane_b32 s92, v16")
        A("s_add_u32 s93, s93, 1")
        A("s_cmp_lg_u32 s92, 0")
        A(f"s_cbranch_scc1 {lbl}_ok")
        A(f"s_cmp_lt_u32 s93, {LIMIT*8}")
        A(f"s_cbranch_scc1 {lbl}")
        LBL(lbl + "_ok")
        for i in range(4):
            A(f"s_bfe_u32 s{S_NB+i}, s92, {(8 << 16) | (8*i)}")

    LBL("L_aux")
    stamp(0)
    sSTR, sROW0, sCOL, sSO, sSTEP, sXB = 4, 5, 6, 7, 8, 9
    sSL0, sBSTR, sDST = 11, 12, 13
    sCNT = 14
    sT0, sT1 = 88, 89
    C("x loads")
    A("v_lshlrev_b32 v1, 4, v0")
    A(f"buffer_load_dwordx4 v[2:5], v1, {srd(R_X)}, 0 offen")
    A(f"buffer_load_dwordx4 v[6:9], v1, {srd(R_X)}, 0 offen offset:1024")
    C("wave 3 acquires the launch nonce")
    A("s_cmp_lg_u32 s3, 3")
    A("s_cbranch_scc1 L_aux_nn")
    A("v_mov_b32 v14, 0")
    A(f"s_mov_b32 s{sCNT}, 0")
    A("s_cmp_ge_u32 s2, 8")
    A("s_cbranch_scc1 L_nonce")
    A("s_or_b32 s92, s92, 1")
    A("v_mov_b32 v16, s92")
    A("v_mov_b32 v17, 0")
    A("s_mov_b64 exec, 1")
    A(f"buffer_atomic_cmpswap v[16:17], v14, {srd(R_DBG)}, 0 offen sc0 sc1")
    A("s_mov_b64 exec, -1")
    A("s_waitcnt vmcnt(0)")
    A("v_readfirstlane_b32 s93, v16")
    A("s_nop 3")
    A("s_cmp_eq_u32 s93, 0")
    A("s_cselect_b32 s92, s92, s93")
    A("s_branch L_nonce_ok")
    LBL("L_nonce")
    A(f"buffer_load_dword v16, v14, {srd(R_DBG)}, 0 offen sc1")
    A("s_waitcnt vmcnt(0)")
    A("v_readfirstlane_b32 s92, v16")
    A("s_nop 3")
    A("s_cmp_lg_u32 s92, 0")
    A("s_cbranch_scc1 L_nonce_ok")
    A(f"s_add_u32 s{sCNT}, s{sCNT}, 1")
    A(f"s_cmp_lt_u32 s{sCNT}, {LIMIT}")
    A("s_cbranch_scc1 L_nonce")
    LBL("L_nonce_ok")
    A("v_mov_b32 v16, s92")
    A(f"v_mov_b32 v17, {L_NONCE}")
    A("ds_write_b32 v17, v16")
    LBL("L_aux_nn")
    C("tile parameters by wave")
    A(f"s_lshl_b32 s{sSL0}, s3, 12")
    A(f"s_add_u32 s{sSL0}, s{sSL0}, {L_SLOT}")
    A("s_cmp_ge_u32 s3, 2")
    A("s_cbranch_scc1 L_aux_gu")
    A(f"s_mov_b32 s{R_T}, s{R_WQ}")
    A(f"s_mov_b32 s{R_T+1}, s{R_WQ+1}")
    A(f"s_mov_b32 s{R_T+2}, 4194304")
    A(f"s_mov_b32 s{R_T+3}, 0x20000")
    A(f"s_mov_b32 s{sSTR}, 8192")
    A(f"s_and_b32 s{sT0}, s2, 3")
    A(f"s_lshl_b32 s{sT0}, s{sT0}, 1")
    A(f"s_add_u32 s{sT0}, s{sT0}, s3")
    A(f"s_lshl_b32 s{sROW0}, s{sT0}, 6")
    A(f"s_lshr_b32 s{sT1}, s2, 2")
    A(f"s_lshl_b32 s{sCOL}, s{sT1}, 7")
    A(f"s_mov_b32 s{sBSTR}, 16384")
    A(f"s_lshl_b32 s{sDST}, s{sT0}, 15")
    A(f"s_lshl_b32 s{sT1}, s{sT1}, 8")
    A(f"s_add_u32 s{sDST}, s{sDST}, s{sT1}")
    A(f"s_add_u32 s{sDST}, s{sDST}, {QP}")
    A("s_branch L_aux_tile")
    LBL("L_aux_gu")
    A("s_cmp_eq_u32 s3, 2")
    A(f"s_cselect_b32 s{R_T}, s{R_WG}, s{R_WU}")
    A(f"s_cselect_b32 s{R_T+1}, s{R_WG+1}, s{R_WU+1}")
    A(f"s_mov_b32 s{R_T+2}, 1835008")
    A(f"s_mov_b32 s{R_T+3}, 0x20000")
    A(f"s_mov_b32 s{sSTR}, 3584")
    A(f"s_and_b32 s{sT0}, s2, 7")
    A(f"s_lshl_b32 s{sROW0}, s{sT0}, 6")
    A(f"s_lshr_b32 s{sT1}, s2, 3")
    A(f"s_lshl_b32 s{sCOL}, s{sT1}, 7")
    A(f"s_mov_b32 s{sBSTR}, 14336")
    A(f"s_mul_i32 s{sDST}, s{sT0}, 28672")
    A(f"s_lshl_b32 s{sT1}, s{sT1}, 8")
    A(f"s_add_u32 s{sDST}, s{sDST}, s{sT1}")
    A(f"s_sub_u32 s{sT1}, s3, 2")
    A(f"s_mul_i32 s{sT1}, s{sT1}, 7168")
    A(f"s_add_u32 s{sDST}, s{sDST}, s{sT1}")
    A(f"s_add_u32 s{sDST}, s{sDST}, {GP}")
    LBL("L_aux_tile")
    VW = 64
    A("v_lshrrev_b32 v10, 3, v0")
    A("v_and_b32 v11, 7, v0")
    A(f"v_mul_lo_u32 v12, v10, s{sSTR}")
    A("v_lshl_add_u32 v12, v11, 4, v12")
    A(f"s_mul_i32 s{sSO}, s{sROW0}, s{sSTR}")
    A(f"s_add_u32 s{sSO}, s{sSO}, s{sCOL}")
    A(f"s_lshl_b32 s{sSTEP}, s{sSTR}, 3")

    def tile_loads():
        for t in range(8):
            A(f"buffer_load_dwordx4 {vr(VW+4*t,4)}, v12, {srd(R_T)}, s{sSO} offen{NT}")
            if t < 7:
                A(f"s_add_u32 s{sSO}, s{sSO}, s{sSTEP}")
    A("s_cmp_ge_u32 s3, 2")
    A("s_cbranch_scc1 L_aux_late")
    tile_loads()
    A("s_waitcnt vmcnt(8)")
    A("s_branch L_aux_ln")
    LBL("L_aux_late")
    A("s_waitcnt vmcnt(0)")
    LBL("L_aux_ln")
    C("layernorm")
    X0, X1 = 20, 28
    for i in range(4):
        A(f"v_lshlrev_b32 v{X0+2*i}, 16, v{2+i}")
        A(f"v_and_b32 v{X0+2*i+1}, 0xffff0000, v{2+i}")
        A(f"v_lshlrev_b32 v{X1+2*i}, 16, v{6+i}")
        A(f"v_and_b32 v{X1+2*i+1}, 0xffff0000, v{6+i}")
    for (X, s) in ((X0, 36), (X1, 37)):
        A(f"v_add_f32 v{s}, v{X}, v{X+1}")
        for i in range(2, 8):
            A(f"v_add_f32 v{s}, v{s}, v{X+i}")
    wave_allreduce([36, 37], [38, 39], "add")
    A("s_mov_b32 s88, 0x3b000000")
    A("v_mul_f32 v36, s88, v36")
    A("v_mul_f32 v37, s88, v37")
    for (X, m, s) in ((X0, 36, 40), (X1, 37, 41)):
        A(f"v_sub_f32 v42, v{X}, v{m}")
        A(f"v_mul_f32 v{s}, v42, v42")
        for i in range(1, 8):
            A(f"v_sub_f32 v42, v{X+i}, v{m}")
            A(f"v_fmac_f32 v{s}, v42, v42")
    wave_allreduce([40, 41], [38, 39], "add")
    A("v_mul_f32 v40, s88, v40")
    A("v_mul_f32 v41, s88, v41")
    round_bf16_pair(36, 37, 42)
    round_bf16_pair(40, 41, 42)
    A("s_mov_b32 s88, 0x3727c5ac")
    A("v_add_f32 v40, s88, v40")
    A("v_add_f32 v41, s88, v41")
    round_bf16_pair(40, 41, 42)
    A("v_sqrt_f32 v40, v40")
    A("v_sqrt_f32 v41, v41")
    A("s_nop 0")
    round_bf16_pair(40, 41, 42)
    A("v_rcp_f32 v44, v40")
    A("v_rcp_f32 v45, v41")
    XN = 48
    for i in range(8):
        A(f"v_sub_f32 v{X0+i}, v{X0+i}, v36")
        A(f"v_sub_f32 v{X1+i}, v{X1+i}, v37")
        round_bf16_pair(X0 + i, X1 + i, 42)
        for (X, sd, rc, dst) in ((X0, 40, 44, XN + 2 * i), (X1, 41, 45, XN + 2 * i + 1)):
            A(f"v_mul_f32 v{dst}, v{X+i}, v{rc}")
            A(f"v_fma_f32 v43, -v{dst}, v{sd}, v{X+i}")
            A(f"v_fmac_f32 v{dst}, v43, v{rc}")
        round_bf16_pair(XN + 2 * i, XN + 2 * i + 1, 42)
    A("v_lshlrev_b32 v1, 6, v0")
    A(f"v_add_u32 v1, {L_XN}, v1")
    for j in range(4):
        A(f"ds_write_b128 v1, {vr(XN+4*j,4)} offset:{16*j}")
    A("s_cmp_ge_u32 s3, 2")
    A("s_cbranch_scc0 L_aux_early")
    tile_loads()
    LBL("L_aux_early")
    A("s_waitcnt lgkmcnt(0)")
    A(f"s_lshl_b32 s{sXB}, s{sROW0}, 3")
    A(f"s_add_u32 s{sXB}, s{sXB}, {L_XN}")
    A("v_lshlrev_b32 v13, 3, v10")
    A(f"v_add_u32 v13, s{sXB}, v13")
    XP = 20
    for t in range(8):
        A(f"ds_read_b64 {vr(XP+2*t,2)}, v13 offset:{64*t}")
    A("s_waitcnt lgkmcnt(0)")
    AC0, AC1 = 36, 44
    for t in range(8):
        A(f"s_waitcnt vmcnt({7-t})")
        for i in range(4):
            w = VW + 4 * t + i
            A(f"v_lshlrev_b32 v52, 16, v{w}")
            A(f"v_and_b32 v53, 0xffff0000, v{w}")
            op = "v_mul_f32" if t == 0 else "v_fmac_f32"
            A(f"{op} v{AC0+2*i}, v52, v{XP+2*t}")
            A(f"{op} v{AC0+2*i+1}, v53, v{XP+2*t}")
            A(f"{op} v{AC1+2*i}, v52, v{XP+2*t+1}")
            A(f"{op} v{AC1+2*i+1}, v53, v{XP+2*t+1}")
    stamp(1)
    C("in-wave slot reduce (own 4 KiB slot area, no barrier)")
    A("v_lshlrev_b32 v1, 9, v10")
    A("v_lshl_add_u32 v1, v11, 5, v1")
    A(f"v_add_u32 v1, s{sSL0}, v1")
    A(f"ds_write_b128 v1, {vr(AC0,4)}")
    A(f"ds_write_b128 v1, {vr(AC0+4,4)} offset:16")
    A(f"ds_write_b128 v1, {vr(AC1,4)} offset:256")
    A(f"ds_write_b128 v1, {vr(AC1+4,4)} offset:272")
    A("s_waitcnt lgkmcnt(0)")
    A("v_and_b32 v2, 31, v0")
    A("v_lshrrev_b32 v3, 5, v0")
    A("v_lshlrev_b32 v1, 4, v2")
    A("v_lshl_add_u32 v1, v3, 11, v1")
    A(f"v_add_u32 v1, s{sSL0}, v1")
    for s in range(4):
        A(f"ds_read_b128 {vr(64+4*s,4)}, v1 offset:{512*s}")
    A("s_waitcnt lgkmcnt(0)")
    for i in range(4):
        A(f"v_add_f32 v{64+i}, v{64+i}, v{68+i}")
        A(f"v_add_f32 v{72+i}, v{72+i}, v{76+i}")
        A(f"v_add_f32 v{64+i}, v{64+i}, v{72+i}")
    swap_allreduce([64, 65, 66, 67], [68, 69, 70, 71], "add", which=("32",))
    read_nonce("L_rn_aux")
    C("store tagged partials")
    tag_pack(64)
    A("v_lshrrev_b32 v3, 4, v2")
    A(f"v_mul_lo_u32 v3, v3, s{sBSTR}")
    A("v_and_b32 v4, 15, v2")
    A("v_lshl_add_u32 v3, v4, 4, v3")
    A("s_cmp_ge_u32 s3, 2")
    A("s_cbranch_scc0 L_aux_st")
    A("s_cmp_ge_u32 s2, 224")
    A("s_cbranch_scc1 L_aux_st_skip")
    LBL("L_aux_st")
    A("s_mov_b32 exec_hi, 0")
    A(f"buffer_store_dwordx4 v[64:67], v3, {srd(R_WS)}, s{sDST} offen sc1")
    A("s_mov_b64 exec, -1")
    LBL("L_aux_st_skip")
    stamp(2)
    sHKV, sB, sH = 4, 5, 6
    A(f"s_lshr_b32 s{sHKV}, s2, 5")
    A(f"s_bfe_u32 s{sB}, s2, 0x10004")
    A(f"s_and_b32 s{sH}, s2, 31")
    A(f"s_mov_b32 s{sCNT}, 0")
    A("v_lshlrev_b32 v12, 10, v10")
    A("v_lshl_add_u32 v12, v11, 4, v12")
    A(f"s_lshl_b32 s89, s{sHKV}, 7")
    A("s_cmp_ge_u32 s3, 2")
    A("s_cbranch_scc1 L_aux_ffn")
    VWO = 128
    A("s_cmp_lg_u32 s3, 0")
    A("s_cbranch_scc1 L_aux_qg0")
    C("wave 0: wo tile loads (128 rows x 64 cols)")
    A(f"s_lshl_b32 s88, s{sH}, 17")
    A("s_add_u32 s88, s88, s89")
    for t in range(16):
        A(f"buffer_load_dwordx4 {vr(VWO+4*t,4)}, v12, {srd(R_WO)}, s88 offen{NT}")
        if t < 15:
            A("s_add_u32 s88, s88, 8192")
    LBL("L_aux_qg0")
    C("q gather (waves 0,1)")
    A("s_lshl_b32 s88, s3, 6")
    A("v_add_u32 v1, s88, v0")
    A("v_lshlrev_b32 v2, 4, v1")
    A(f"s_lshl_b32 s88, s{sB}, 14")
    A(f"s_lshl_b32 s89, s{sHKV}, 11")
    A("s_add_u32 s88, s88, s89")
    A(f"s_add_u32 s90, s88, {QP}")
    LBL("L_qg")
    A("s_mov_b32 s88, s90")
    for ks in range(8):
        A(f"buffer_load_dwordx4 {vr(64+4*ks,4)}, v2, {srd(R_WS)}, s88 offen sc1")
        if ks < 7:
            A("s_add_u32 s88, s88, 32768")
    A("s_waitcnt vmcnt(0)")
    tag_check([64 + 4 * k for k in range(8)], 4, 5, 6)
    retry_tail("L_qg", 4, sCNT)
    tag_strip([64 + 4 * k for k in range(8)])
    for i in range(4):
        for k in range(1, 8):
            A(f"v_add_f32 v{64+i}, v{64+i}, v{64+4*k+i}")
    A("v_cvt_pk_bf16_f32 v4, v64, v65")
    A("v_cvt_pk_bf16_f32 v5, v66, v67")
    A("v_lshlrev_b32 v3, 3, v1")
    A(f"v_add_u32 v3, {L_Q}, v3")
    A("ds_write_b64 v3, v[4:5]")
    A("s_waitcnt lgkmcnt(0)")
    stamp(3)
    A("s_barrier")
    A("s_cmp_lg_u32 s3, 0")
    A("s_cbranch_scc1 L_end")
    stamp(4)
    C("wave 0: stage wo through LDS -> MFMA B fragments")
    BF = 64
    A("v_lshlrev_b32 v1, 7, v10")
    A("v_lshl_add_u32 v1, v11, 4, v1")
    A(f"v_add_u32 v1, {L_WT}, v1")
    A("v_lshrrev_b32 v2, 4, v0")
    A("v_bfe_u32 v3, v0, 2, 2")
    A("v_lshl_add_u32 v2, v2, 3, v3")
    A("v_and_b32 v3, 3, v0")
    A("v_lshlrev_b32 v2, 7, v2")
    A("v_lshl_add_u32 v2, v3, 3, v2")
    A(f"v_add_u32 v2, {L_WT}, v2")
    for p in range(2):
        for t in range(8):
            A(f"ds_write_b128 v1, {vr(VWO+4*(8*p+t),4)} offset:{1024*t}")
        A("s_waitcnt lgkmcnt(0)")
        for sp in range(2):
            for nt in range(4):
                base = BF + 16 * (2 * p + sp) + 4 * nt
                A(f"ds_read_b64_tr_b16 {vr(base,2)}, v2 offset:{4096*sp + 32*nt}")
                A(f"ds_read_b64_tr_b16 {vr(base+2,2)}, v2 offset:{4096*sp + 512 + 32*nt}")
        A("s_waitcnt lgkmcnt(0)")
    stamp(5)
    C("attention partial gather, both batches")
    sHK2 = 7
    A(f"s_lshr_b32 s{sHK2}, s{sH}, 2")
    A(f"s_mov_b32 s{sCNT}, 0")
    A(f"s_lshl_b32 s88, s{sHK2}, 7")
    A(f"s_and_b32 s89, s{sH}, 3")
    A("s_add_u32 s88, s88, s89")
    A(f"s_mul_i32 s88, s88, {AP_REC}")
    A(f"s_add_u32 s90, s88, {AP}")
    A("v_and_b32 v1, 15, v0")
    A(f"s_mov_b32 s89, {4*AP_REC}")
    A("v_mul_lo_u32 v2, v1, s89")
    A("v_lshrrev_b32 v6, 5, v0")
    A("v_and_b32 v7, 31, v0")
    A(f"s_mov_b32 s89, {8*4*AP_REC}")
    A("v_mul_lo_u32 v8, v6, s89")
    A("v_lshl_add_u32 v8, v7, 4, v8")
    G = 128
    LBL("L_ag")
    A("s_mov_b32 s88, s90")
    for b in range(2):
        A(f"buffer_load_dwordx4 {vr(G+36*b,4)}, v2, {srd(R_WS)}, s88 offen offset:512 sc1")
        for t in range(8):
            A(f"buffer_load_dwordx4 {vr(G+36*b+4+4*t,4)}, v8, {srd(R_WS)}, s88 offen sc1")
            A(f"s_add_u32 s88, s88, {4*AP_REC}")
        if b == 0:
            A(f"s_add_u32 s88, s88, {8*4*AP_REC}")
    A("s_waitcnt vmcnt(0)")
    tag_check([G + 4 * k for k in range(18)], 4, 5, 9)
    retry_tail("L_ag", 4, sCNT)
    tag_strip([G + 4 * k for k in range(18)])
    stamp(6)
    A(f"v_mov_b32 v20, v{G}")
    A(f"v_mov_b32 v21, v{G+36}")
    row_allreduce([20, 21], "max")
    A("s_mov_b32 s88, 0x3fb8aa3b")
    for b in range(2):
        A(f"v_sub_f32 v{22+b}, v{G+36*b}, v{20+b}")
        A(f"v_mul_f32 v{22+b}, s88, v{22+b}")
        A(f"v_exp_f32 v{22+b}, v{22+b}")
    A("s_nop 0")
    for b in range(2):
        A(f"v_mul_f32 v{24+b}, v{G+36*b+1}, v{22+b}")
    row_allreduce([24, 25], "add")
    A("v_lshlrev_b32 v9, 5, v6")
    for t in range(8):
        A(f"v_add_u32 v{26+t}, {4*t}, v9")
    for b in range(2):
        for t in range(8):
            A(f"ds_bpermute_b32 v{34+8*b+t}, v{26+t}, v{22+b}")
    A("s_waitcnt lgkmcnt(0)")
    for b in range(2):
        for i in range(4):
            A(f"v_mul_f32 v{50+4*b+i}, v{G+36*b+4+i}, v{34+8*b}")
        for t in range(1, 8):
            for i in range(4):
                A(f"v_fmac_f32 v{50+4*b+i}, v{G+36*b+4+4*t+i}, v{34+8*b+t}")
    swap_allreduce(list(range(50, 58)), list(range(26, 34)), "add", which=("32",))
    A("v_rcp_f32 v20, v24")
    A("v_rcp_f32 v21, v25")
    A("s_nop 0")
    for b in range(2):
        for i in range(4):
            r = 50 + 4 * b + i
            A(f"v_mul_f32 v26, v{r}, v{20+b}")
            A(f"v_fma_f32 v27, -v26, v{24+b}, v{r}")
            A(f"v_fma_f32 v{r}, v27, v{20+b}, v26")
    for b in range(2):
        A(f"v_cvt_pk_bf16_f32 v{28+2*b}, v{50+4*b}, v{51+4*b}")
        A(f"v_cvt_pk_bf16_f32 v{29+2*b}, v{52+4*b}, v{53+4*b}")
    A("v_lshlrev_b32 v3, 3, v7")
    A(f"v_add_u32 v3, {L_O}, v3")
    A("ds_write_b64 v3, v[28:29]")
    A("ds_write_b64 v3, v[30:31] offset:256")
    A("v_and_b32 v3, 1, v0")
    A("v_lshlrev_b32 v3, 8, v3")
    A("v_lshrrev_b32 v4, 4, v0")
    A("v_lshl_add_u32 v3, v4, 4, v3")
    A(f"v_add_u32 v3, {L_O}, v3")
    A("s_waitcnt lgkmcnt(0)")
    AF = 32
    for s in range(4):
        A(f"ds_read_b128 {vr(AF+4*s,4)}, v3 offset:{64*s}")
    A("s_waitcnt lgkmcnt(0)")
    AC = 48
    for s in range(4):
        for nt in range(4):
            src = "0" if s == 0 else vr(AC + 4 * nt, 4)
            A(f"v_mfma_f32_16x16x32_bf16 {vr(AC+4*nt,4)}, {vr(AF+4*s,4)}, {vr(BF+16*s+4*nt,4)}, {src}")
    A("s_nop 7")
    A("s_nop 1")
    stamp(7)
    for b in range(2):
        for nt in range(4):
            A(f"v_mov_b32 v{4+4*b+nt}, v{AC+4*nt+b}")
    tag_pack(4)
    tag_pack(8)
    A("v_lshlrev_b32 v1, 4, v0")
    A("s_lshl_b32 s88, s2, 9")
    A(f"s_add_u32 s88, s88, {OPA}")
    A("s_mov_b64 exec, 0xffff")
    A(f"buffer_store_dwordx4 v[4:7], v1, {srd(R_WS)}, s88 offen sc1")
    A(f"buffer_store_dwordx4 v[8:11], v1, {srd(R_WS)}, s88 offen offset:256 sc1")
    A("s_mov_b64 exec, -1")
    stamp(8)
    C("phase 4: outputs b=(w>>4)&1, cols cs*64 + (w&15) + 16*nt")
    A("s_and_b32 s88, s2, 15")
    A("s_lshl_b32 s88, s88, 1")
    A(f"s_lshl_b32 s89, s{sHKV}, 7")
    A("s_add_u32 s88, s88, s89")
    A(f"s_lshl_b32 s89, s{sB}, 10")
    A("s_add_u32 s91, s88, s89")
    A("v_mov_b32 v20, s91")
    for nt in range(4):
        A(f"buffer_load_ushort v{22+nt}, v20, {srd(R_X)}, 0 offen offset:{32*nt}")
    A("v_and_b32 v1, 31, v0")
    A("v_lshlrev_b32 v1, 9, v1")
    A("v_lshrrev_b32 v2, 5, v0")
    A("v_lshl_add_u32 v1, v2, 17, v1")
    A(f"s_lshl_b32 s88, s{sHKV}, 14")
    A(f"s_lshl_b32 s89, s{sB}, 8")
    A("s_add_u32 s88, s88, s89")
    A("s_and_b32 s89, s2, 15")
    A("s_lshl_b32 s89, s89, 4")
    A("s_add_u32 s88, s88, s89")
    A(f"s_add_u32 s88, s88, {OPA}")
    A(f"s_mov_b32 s{sCNT}, 0")
    LBL("L_og")
    A(f"buffer_load_dwordx4 v[4:7], v1, {srd(R_WS)}, s88 offen sc1")
    A("s_waitcnt vmcnt(0)")
    tag_check([4], 8, 9, 10)
    retry_tail("L_og", 8, sCNT)
    tag_strip([4])
    stamp(9)
    row_allreduce([4, 5, 6, 7], "add")
    swap_allreduce([4, 5, 6, 7], [8, 9, 10, 11], "add", which=("16",))
    round_bf16_pair(4, 5, 12)
    round_bf16_pair(6, 7, 12)
    for i in range(4):
        A(f"v_mov_b32 v{8+i}, v{4+i}")
    A("s_nop 1")
    for i in range(4):
        A(f"v_permlane32_swap_b32 v{4+i}, v{8+i}")
    A("s_nop 1")
    for i in range(4):
        A(f"v_lshlrev_b32 v{22+i}, 16, v{22+i}")
        A(f"v_add_f32 v{4+i}, v{22+i}, v{4+i}")
    round_bf16_pair(4, 5, 12)
    round_bf16_pair(6, 7, 12)
    for i in range(4):
        A(f"v_add_f32 v{4+i}, v{4+i}, v{8+i}")
    A("v_cvt_pk_bf16_f32 v12, v4, v5")
    A("v_cvt_pk_bf16_f32 v13, v6, v7")
    A("s_mov_b64 exec, 1")
    A(f"buffer_store_short v12, v20, {srd(R_OUT)}, 0 offen")
    A(f"buffer_store_short_d16_hi v12, v20, {srd(R_OUT)}, 0 offen offset:32")
    A(f"buffer_store_short v13, v20, {srd(R_OUT)}, 0 offen offset:64")
    A(f"buffer_store_short_d16_hi v13, v20, {srd(R_OUT)}, 0 offen offset:96")
    stamp(10)
    stamp_store(0, 11)
    A("s_branch L_end")

    LBL("L_aux_ffn")
    VWD = 128
    A(f"s_mul_i32 s88, s{sH}, 57344")
    A("s_add_u32 s88, s88, s89")
    for t in range(7):
        A(f"buffer_load_dwordx4 {vr(VWD+4*t,4)}, v12, {srd(R_WD)}, s88 offen{NT}")
        if t < 6:
            A("s_add_u32 s88, s88, 8192")
    A("s_barrier")
    A("s_mov_b64 exec, 0xffff")
    A("v_min_u32 v1, 13, v0")
    A("v_lshlrev_b32 v2, 4, v1")
    A("s_sub_u32 s89, s3, 2")
    A("s_mul_i32 s88, s89, 14336")
    A(f"s_mul_i32 s91, s{sH}, 224")
    A("s_add_u32 s88, s88, s91")
    A(f"s_add_u32 s90, s88, {GP}")
    LBL("L_hg")
    A("s_mov_b32 s88, s90")
    for ks in range(8):
        A(f"buffer_load_dwordx4 {vr(64+8*ks,4)}, v2, {srd(R_WS)}, s88 offen sc1")
        A("s_add_u32 s91, s88, 7168")
        A(f"buffer_load_dwordx4 {vr(64+8*ks+4,4)}, v2, {srd(R_WS)}, s91 offen sc1")
        if ks < 7:
            A("s_add_u32 s88, s88, 28672")
    A("s_waitcnt vmcnt(0)")
    tag_check([64 + 4 * k for k in range(16)], 4, 5, 6)
    retry_tail("L_hg", 4, sCNT)
    tag_strip([64 + 4 * k for k in range(16)])
    for ks in range(1, 8):
        for i in range(8):
            A(f"v_add_f32 v{64+i}, v{64+i}, v{64+8*ks+i}")
    for i in range(0, 8, 2):
        round_bf16_pair(64 + i, 65 + i, 42)
    A("s_mov_b32 s88, 0xbfb8aa3b")
    for i in range(4):
        A(f"v_mul_f32 v72, s88, v{64+i}")
        A("v_exp_f32 v72, v72")
        A("s_nop 0")
        A("v_add_f32 v72, 1.0, v72")
        A("v_rcp_f32 v73, v72")
        A("s_nop 0")
        A(f"v_mul_f32 v74, v{64+i}, v73")
        A(f"v_fma_f32 v75, -v74, v72, v{64+i}")
        A("v_fmac_f32 v74, v75, v73")
        A(f"v_mov_b32 v{64+i}, v74")
    round_bf16_pair(64, 65, 42)
    round_bf16_pair(66, 67, 42)
    for i in range(4):
        A(f"v_mul_f32 v{64+i}, v{64+i}, v{68+i}")
    round_bf16_pair(64, 65, 42)
    round_bf16_pair(66, 67, 42)
    A("v_lshlrev_b32 v3, 4, v0")
    A(f"v_add_u32 v3, s{sSL0}, v3")
    A("ds_write_b128 v3, v[64:67] offset:2048")
    A("s_mov_b64 exec, -1")
    A("s_waitcnt lgkmcnt(0)")
    A("v_lshlrev_b32 v3, 2, v10")
    A(f"v_add_u32 v3, s{sSL0}, v3")
    for t in range(7):
        A(f"ds_read_b32 v{20+t}, v3 offset:{2048+32*t}")
    A("s_waitcnt lgkmcnt(0)")
    for t in range(7):
        for i in range(4):
            w = VWD + 4 * t + i
            A(f"v_lshlrev_b32 v52, 16, v{w}")
            A(f"v_and_b32 v53, 0xffff0000, v{w}")
            op = "v_mul_f32" if t == 0 else "v_fmac_f32"
            A(f"{op} v{36+2*i}, v52, v{20+t}")
            A(f"{op} v{37+2*i}, v53, v{20+t}")
    A("v_lshlrev_b32 v1, 8, v10")
    A("v_lshl_add_u32 v1, v11, 5, v1")
    A(f"v_add_u32 v1, s{sSL0}, v1")
    A("ds_write_b128 v1, v[36:39]")
    A("ds_write_b128 v1, v[40:43] offset:16")
    A("s_waitcnt lgkmcnt(0)")
    A("v_lshlrev_b32 v1, 2, v0")
    A(f"v_add_u32 v1, s{sSL0}, v1")
    for rr in range(8):
        A(f"ds_read_b32 v{20+rr}, v1 offset:{256*rr}")
    A("s_waitcnt lgkmcnt(0)")
    for rr in range(1, 8):
        A(f"v_add_f32 v20, v20, v{20+rr}")
    A("ds_write_b32 v1, v20 offset:2560")
    A("s_waitcnt lgkmcnt(0)")
    for nt in range(4):
        A(f"ds_read_b32 v{4+nt}, v1 offset:{2560+64*nt}")
    A("s_waitcnt lgkmcnt(0)")
    tag_pack(4)
    A("v_lshlrev_b32 v1, 4, v0")
    A("s_lshl_b32 s88, s2, 9")
    A("s_lshl_b32 s91, s89, 8")
    A("s_add_u32 s88, s88, s91")
    A(f"s_add_u32 s88, s88, {OPB}")
    A("s_mov_b64 exec, 0xffff")
    A(f"buffer_store_dwordx4 v[4:7], v1, {srd(R_WS)}, s88 offen sc1")
    A("s_branch L_end")

    LBL("L_stream")
    stamp(0)
    sSW, sKV, sLB = 4, 5, 6
    A(f"s_sub_u32 s{sSW}, s3, 4")
    A("s_lshr_b32 s88, s2, 5")
    A("s_bfe_u32 s89, s2, 0x10004")
    A("s_lshl_b32 s89, s89, 3")
    A("s_add_u32 s88, s88, s89")
    A(f"s_lshl_b32 s{sKV}, s88, 23")
    A("s_and_b32 s88, s2, 15")
    A("s_lshl_b32 s88, s88, 16")
    A(f"s_add_u32 s{sKV}, s{sKV}, s88")
    A(f"s_lshl_b32 s{sLB}, s{sSW}, 14")
    A(f"s_lshl_b32 s88, s{sSW}, 10")
    A(f"s_add_u32 s{sKV}, s{sKV}, s88")
    A(f"s_add_u32 s{sKV}, s{sKV}, 7340032")
    A("v_lshrrev_b32 v1, 4, v0")
    A("v_and_b32 v2, 15, v0")
    for tt in range(4):
        A(f"v_add_u32 v3, {4*tt}, v1")
        A("v_xor_b32 v3, v3, v2")
        A("v_lshlrev_b32 v3, 4, v3")
        A(f"v_lshl_add_u32 v{4+tt}, v1, 8, v3")
    for tt in range(2):
        A(f"v_add_u32 v3, {4*tt}, v1")
        A("v_lshlrev_b32 v3, 1, v3")
        A("v_xor_b32 v3, v3, v2")
        A("v_lshlrev_b32 v3, 4, v3")
        A(f"v_lshl_add_u32 v{8+tt}, v1, 8, v3")
    n_issued = 0
    for (R, LB, isV) in ((R_K, L_K, 0), (R_V, L_V, 1)):
        A(f"s_mov_b32 s88, s{sKV}")
        A(f"s_add_u32 s89, s{sLB}, {LB}")
        for t in range(16):
            A("s_mov_b32 m0, s89")
            if n_issued >= DEPTH:
                A(f"s_waitcnt vmcnt({DEPTH-1})")
            else:
                A("s_nop 0")
            vo = (8 + (t & 1)) if isV else (4 + (t & 3))
            A(f"buffer_load_dwordx4 v{vo}, {srd(R)}, s88 offen{NT} lds")
            n_issued += 1
            A("s_add_u32 s88, s88, 4096")
            A("s_add_u32 s89, s89, 1024")
    stamp(1)
    read_nonce("L_rn_str")
    C("read addresses")
    for s in range(4):
        A(f"v_add_u32 v3, {4*s}, v1")
        A("v_xor_b32 v3, v3, v2")
        A("v_lshlrev_b32 v3, 4, v3")
        A("v_lshl_add_u32 v3, v2, 8, v3")
        A(f"v_add_u32 v{10+s}, s{sLB}, v3")
    A("v_bfe_u32 v14, v0, 2, 2")
    A("v_and_b32 v19, 3, v0")
    A("v_lshl_add_u32 v16, v1, 2, v14")
    A("v_and_b32 v17, 7, v16")
    A("v_lshlrev_b32 v16, 8, v16")
    A("v_lshl_add_u32 v16, v19, 3, v16")
    A(f"v_add_u32 v16, s{sLB}, v16")
    A(f"v_add_u32 v16, {L_V}, v16")
    for nt in range(8):
        A(f"v_xor_b32 v3, {nt}, v17")
        A(f"v_lshl_add_u32 v{20+nt}, v3, 5, v16")
    A("v_and_b32 v3, 3, v2")
    A("v_lshlrev_b32 v3, 8, v3")
    A("v_lshl_add_u32 v3, v1, 4, v3")
    A(f"v_add_u32 v18, {L_Q}, v3")
    A("s_barrier")
    stamp(2)
    QF = 32
    for s in range(4):
        A(f"ds_read_b128 {vr(QF+4*s,4)}, v18 offset:{64*s}")
    A("s_waitcnt vmcnt(16)")
    stamp(3)
    KF = 64
    for T in range(4):
        for s in range(4):
            A(f"ds_read_b128 {vr(KF+16*T+4*s,4)}, v{10+s} offset:{4096*T}")
    SS = 48
    for T in range(4):
        A(f"s_waitcnt lgkmcnt({12-4*T})")
        for s in range(4):
            src = "0" if s == 0 else vr(SS + 4 * T, 4)
            A(f"v_mfma_f32_16x16x32_bf16 {vr(SS+4*T,4)}, {vr(KF+16*T+4*s,4)}, {vr(QF+4*s,4)}, {src}")
    A("s_nop 7")
    A("s_nop 1")
    C("softmax")
    A("s_mov_b32 s88, 0x3db504f3")
    for j in range(0, 16, 2):
        round_bf16_pair(SS + j, SS + j + 1, 3)
        A(f"v_mul_f32 v{SS+j}, s88, v{SS+j}")
        A(f"v_mul_f32 v{SS+j+1}, s88, v{SS+j+1}")
        round_bf16_pair(SS + j, SS + j + 1, 3)
    A(f"v_max3_f32 v28, v{SS}, v{SS+1}, v{SS+2}")
    for j in range(3, 15, 2):
        A(f"v_max3_f32 v28, v28, v{SS+j}, v{SS+j+1}")
    A(f"v_max_f32 v28, v28, v{SS+15}")
    swap_allreduce([28], [29], "max")
    A("s_mov_b32 s88, 0x3fb8aa3b")
    for j in range(16):
        A(f"v_sub_f32 v{SS+j}, v{SS+j}, v28")
        A(f"v_mul_f32 v{SS+j}, s88, v{SS+j}")
        A(f"v_exp_f32 v{SS+j}, v{SS+j}")
    A("s_nop 0")
    A(f"v_add_f32 v29, v{SS}, v{SS+1}")
    for j in range(2, 16):
        A(f"v_add_f32 v29, v29, v{SS+j}")
    swap_allreduce([29], [30], "add")
    PP = 32
    for j in range(8):
        A(f"v_cvt_pk_bf16_f32 v{PP+j}, v{SS+2*j}, v{SS+2*j+1}")
    stamp(4)
    C("PV")
    A("s_waitcnt vmcnt(0)")
    stamp(5)
    VF = 64
    for u in range(2):
        for nt in range(8):
            base = VF + 32 * u + 4 * nt
            A(f"ds_read_b64_tr_b16 {vr(base,2)}, v{20+nt} offset:{8192*u}")
            A(f"ds_read_b64_tr_b16 {vr(base+2,2)}, v{20+nt} offset:{8192*u+4096}")
    OA = 128
    for u in range(2):
        A(f"s_waitcnt lgkmcnt({0 if u else 15})")
        for nt in range(8):
            src = "0" if u == 0 else vr(OA + 4 * nt, 4)
            A(f"v_mfma_f32_16x16x32_bf16 {vr(OA+4*nt,4)}, {vr(PP+4*u,4)}, {vr(VF+32*u+4*nt,4)}, {src}")
    A("s_nop 7")
    A("s_nop 1")
    stamp(6)
    C("write wave partial to own K region, then flag")
    A("v_lshlrev_b32 v3, 2, v0")
    A(f"v_add_u32 v3, s{sLB}, v3")
    A("s_mov_b64 exec, 0xffff")
    for nt in range(8):
        for r in range(4):
            A(f"ds_write_b32 v3, v{OA+4*nt+r} offset:{(r*128+nt*16)*4}")
    A("s_mov_b64 exec, 15")
    A("ds_write_b32 v3, v28 offset:2048")
    A("ds_write_b32 v3, v29 offset:2064")
    A("s_mov_b64 exec, -1")
    A("v_mov_b32 v4, s92")
    A(f"s_lshl_b32 s88, s{sSW}, 2")
    A(f"s_add_u32 s88, s88, {L_FLAGS}")
    A("v_mov_b32 v5, s88")
    A("s_waitcnt lgkmcnt(0)")
    A("ds_write_b32 v5, v4")
    A(f"v_mov_b32 v5, {L_FLAGS}")
    A("s_mov_b32 s90, 0")
    LBL("L_sf")
    A("ds_read_b128 v[32:35], v5")
    A("s_waitcnt lgkmcnt(0)")
    A("v_xor_b32 v32, v32, v4")
    A("v_xor_b32 v33, v33, v4")
    A("v_xor_b32 v34, v34, v4")
    A("v_xor_b32 v35, v35, v4")
    A("v_or3_b32 v32, v32, v33, v34")
    A("v_or_b32 v32, v32, v35")
    A("v_cmp_ne_u32 vcc, 0, v32")
    A("s_nop 4")
    A("s_cbranch_vccz L_sf_ok")
    A("s_add_u32 s90, s90, 1")
    A(f"s_cmp_lt_u32 s90, {LIMIT*8}")
    A("s_cbranch_scc1 L_sf")
    LBL("L_sf_ok")
    C("combine 4 waves: this wave handles head hh = sw; lane -> 4 d's (dq = l&31)")
    A(f"s_lshl_b32 s88, s{sSW}, 9")
    A("v_and_b32 v5, 31, v0")
    A("v_lshlrev_b32 v3, 4, v5")
    A("v_add_u32 v3, s88, v3")
    A(f"s_lshl_b32 s88, s{sSW}, 2")
    A("v_mov_b32 v4, s88")
    for wv in range(4):
        A(f"ds_read_b128 {vr(32+4*wv,4)}, v3 offset:{L_K+16384*wv}")
        A(f"ds_read_b32 v{50+wv}, v4 offset:{L_K+16384*wv+2048}")
        A(f"ds_read_b32 v{54+wv}, v4 offset:{L_K+16384*wv+2064}")
    A("s_waitcnt lgkmcnt(0)")
    A("v_max3_f32 v58, v50, v51, v52")
    A("v_max_f32 v58, v58, v53")
    A("s_mov_b32 s88, 0x3fb8aa3b")
    for wv in range(4):
        A(f"v_sub_f32 v{50+wv}, v{50+wv}, v58")
        A(f"v_mul_f32 v{50+wv}, s88, v{50+wv}")
        A(f"v_exp_f32 v{50+wv}, v{50+wv}")
    A("s_nop 0")
    for i in range(4):
        A(f"v_mul_f32 v{60+i}, v{32+i}, v50")
    A("v_mul_f32 v59, v54, v50")
    for wv in range(1, 4):
        for i in range(4):
            A(f"v_fmac_f32 v{60+i}, v{32+4*wv+i}, v{50+wv}")
        A(f"v_fmac_f32 v59, v{54+wv}, v{50+wv}")
    A("v_cmp_gt_u32 vcc, 32, v0")
    A("v_lshlrev_b32 v3, 4, v5")
    A("s_nop 0")
    A("v_cndmask_b32 v60, v58, v60, vcc")
    A("v_cndmask_b32 v61, v59, v61, vcc")
    A("v_cndmask_b32 v62, 0, v62, vcc")
    A("v_cndmask_b32 v63, 0, v63, vcc")
    A("v_mov_b32 v4, 0x200")
    A("v_cndmask_b32 v3, v4, v3, vcc")
    tag_pack(60)
    A("s_lshl_b32 s88, s2, 2")
    A(f"s_add_u32 s88, s88, s{sSW}")
    A(f"s_mul_i32 s88, s88, {AP_REC}")
    A(f"s_add_u32 s88, s88, {AP}")
    A("s_mov_b32 exec_hi, 1")
    A(f"buffer_store_dwordx4 v[60:63], v3, {srd(R_WS)}, s88 offen sc1")
    stamp(7)
    if PROF:
        A("s_cmp_lg_u32 s3, 4")
        A("s_cbranch_scc1 L_end")
        stamp_store(1, 8)
    LBL("L_end")
    A("s_endpgm")
    nv = 240 if PROF else 200
    out.append('.section .rodata,"a"')
    out.append(".p2align 6")
    out.append(f".amdhsa_kernel {NAME}_kernel")
    out.append(f"  .amdhsa_next_free_vgpr {nv}")
    out.append("  .amdhsa_next_free_sgpr 96")
    out.append(f"  .amdhsa_accum_offset {nv}")
    out.append("  .amdhsa_group_segment_fixed_size 0")
    out.append("  .amdhsa_kernarg_size 96")
    out.append("  .amdhsa_user_sgpr_count 2")
    out.append("  .amdhsa_user_sgpr_kernarg_segment_ptr 1")
    out.append("  .amdhsa_system_sgpr_workgroup_id_x 1")
    out.append(".end_amdhsa_kernel")


gen()
txt = "\n".join(out) + "\n"
dst = sys.argv[1] if len(sys.argv) > 1 else "cdna_kernels/" + NAME + ".s"
open(dst, "w").write(txt)
print("wrote", dst, len(out), "lines", "STAMP", STAMP)
```

```python
import sys, os

NAME = "parallel_sum__sliding_block_cached__swiglu_ffn__decode"
PROF = int(os.environ.get("PROF", "0"))
NT = " nt" if int(os.environ.get("NT", "1")) else ""
DEPTH = int(os.environ.get("DEPTH", "8"))
SLEEP = int(os.environ.get("SLEEP", "1"))
HEAD = int(os.environ.get("HEAD", "0"))

QP = 0
GP = 262144
AP = GP + 8 * 2 * 2 * 1792 * 4
AP_REC = 528
OP = AP + 256 * 4 * AP_REC
OPA = OP
OPB = OP + 131072
WS_SIZE = OP + 256 * 1024
STAMP = WS_SIZE
WS_SIZE_ALL = (STAMP + 256 * 8 * 128) if PROF else WS_SIZE

L_K = 0
L_V = 65536
L_XN = 131072
L_SLOT = L_XN + 4096
L_Q = L_SLOT + 16384
L_O = L_Q + 1024
L_NONCE = L_O + 512
L_FLAGS = L_NONCE + 16
L_PX = L_NONCE + 64
L_END = L_PX + 512
L_WT = L_SLOT
QPOLL = int(os.environ.get("QPOLL", "2"))
FLATE = int(os.environ.get("FLATE", "24"))
NPRE = int(os.environ.get("NPRE", "8"))

LIMIT = 400000
out = []


def A(s):
    out.append("    " + s)


def LBL(s):
    out.append(s + ":")


def C(s):
    out.append("    ; " + s)


P_X, P_K, P_V, P_WQ, P_WO, P_BX, P_WG, P_WU = 16, 18, 20, 22, 24, 26, 28, 30
P_WD, P_OUT, P_DBG, P_WS = 32, 34, 36, 38
R_X, R_K, R_V, R_WQ, R_WO, R_WG, R_WU, R_WD, R_OUT, R_DBG, R_WS, R_T = (
    40, 44, 48, 52, 56, 60, 64, 68, 72, 76, 80, 84)
S_NB = 16
V_FF = 15


def srd(r):
    return f"s[{r}:{r+3}]"


def build_srd(dst, ptr, size):
    A(f"s_mov_b32 s{dst}, s{ptr}")
    A(f"s_and_b32 s{dst+1}, s{ptr+1}, 0xffff")
    A(f"s_mov_b32 s{dst+2}, {size}")
    A(f"s_mov_b32 s{dst+3}, 0x20000")


def vr(i, n):
    return f"v[{i}:{i+n-1}]"


DPP_STEPS = ["quad_perm:[1,0,3,2]", "quad_perm:[2,3,0,1]", "row_half_mirror", "row_mirror"]


def row_allreduce(regs, op):
    for st in DPP_STEPS:
        A("s_nop 1")
        for r in regs:
            A(f"v_{op}_f32_dpp v{r}, v{r}, v{r} {st} row_mask:0xf bank_mask:0xf")


def swap_allreduce(regs, tmps, op, which=("16", "32")):
    for wch in which:
        for r, t in zip(regs, tmps):
            A(f"v_mov_b32 v{t}, v{r}")
        A("s_nop 1")
        for r, t in zip(regs, tmps):
            A(f"v_permlane{wch}_swap_b32 v{r}, v{t}")
        A("s_nop 1")
        for r, t in zip(regs, tmps):
            A(f"v_{op}_f32 v{r}, v{r}, v{t}")


def wave_allreduce(regs, tmps, op):
    row_allreduce(regs, op)
    swap_allreduce(regs, tmps, op)


def round_bf16_pair(a, b, t):
    A(f"v_cvt_pk_bf16_f32 v{t}, v{a}, v{b}")
    A(f"v_lshlrev_b32 v{a}, 16, v{t}")
    A(f"v_and_b32 v{b}, 0xffff0000, v{t}")


def stamp(idx):
    if not PROF:
        return
    A("s_memrealtime s[94:95]")
    A("s_waitcnt lgkmcnt(0)")
    A(f"v_mov_b32 v{224+idx}, s94")


DBGST = int(os.environ.get("DBGST", "0"))


def stamp_store(role, n):
    if not PROF:
        return
    if DBGST:
        A(f"s_cmp_lg_u32 s2, {DBGST}")
        A(f"s_cbranch_scc1 L_end")
        A(f"s_mov_b32 s{R_DBG}, s{P_DBG}")
        A(f"s_and_b32 s{R_DBG+1}, s{P_DBG+1}, 0xffff")
        A(f"s_mov_b32 s{R_DBG+2}, 256")
        A(f"s_mov_b32 s{R_DBG+3}, 0x20000")
        A("s_mov_b64 exec, 1")
        A("v_mov_b32 v255, 0")
        idx = list(range(1, 11)) if role == 0 else [1, 2, 5, 6, 7]
        base = 1 if role == 0 else 11
        for j, i in enumerate(idx):
            A(f"v_sub_u32 v{224+i}, v{224+i}, v224")
            A(f"buffer_store_dword v{224+i}, v255, {srd(R_DBG)}, 0 offen offset:{4*(base+j)}")
        A("s_waitcnt vmcnt(0)")
        return
    A("s_mov_b64 exec, 1")
    A("s_lshl_b32 s94, s2, 10")
    A("s_lshl_b32 s95, s3, 7")
    A("s_add_u32 s94, s94, s95")
    A(f"s_add_u32 s94, s94, {STAMP}")
    A("v_mov_b32 v255, 0")
    for i in range(n):
        A(f"buffer_store_dword v{224+i}, v255, {srd(R_WS)}, s94 offen offset:{4*i}")
    A("s_waitcnt vmcnt(0)")


def tag_pack(base):
    for i in range(4):
        A(f"v_add_u32 v{base+i}, 0x80, v{base+i}")
        A(f"v_bfi_b32 v{base+i}, v{V_FF}, s{S_NB+i}, v{base+i}")


def tag_check(bases, bad, t0, t1):
    first = True
    for b in bases:
        for i in range(0, 4, 2):
            A(f"v_xor_b32 v{t0}, s{S_NB+i}, v{b+i}")
            A(f"v_xor_b32 v{t1}, s{S_NB+i+1}, v{b+i+1}")
            if first:
                A(f"v_or_b32 v{bad}, v{t0}, v{t1}")
                first = False
            else:
                A(f"v_or3_b32 v{bad}, v{bad}, v{t0}, v{t1}")
    A(f"v_and_b32 v{bad}, 0xff, v{bad}")


def tag_strip(bases):
    for b in bases:
        for i in range(4):
            A(f"v_and_b32 v{b+i}, 0xffffff00, v{b+i}")


def retry_tail(label, bad, scnt):
    A(f"v_cmp_ne_u32 vcc, 0, v{bad}")
    A("s_nop 4")
    A(f"s_cbranch_vccz {label}_ok")
    A(f"s_sleep {SLEEP}")
    A(f"s_add_u32 s{scnt}, s{scnt}, 1")
    A(f"s_cmp_lt_u32 s{scnt}, {LIMIT}")
    A(f"s_cbranch_scc1 {label}")
    LBL(label + "_ok")


def gen():
    hdr = open("cdna_kernels/" + NAME + ".s.ref").read().split("\n")
    for ln in hdr:
        if ln.startswith("; @launch"):
            break
        out.append(ln)
    out.append(f"; @launch grid=(256,1,1) block=(512,1,1) lds={L_END}")
    out.append('.amdgcn_target "amdgcn-amd-amdhsa--gfx950"')
    out.append(".text")
    out.append(f".globl {NAME}_kernel")
    out.append(".p2align 8")
    out.append(f".type {NAME}_kernel,@function")
    LBL(f"{NAME}_kernel")

    A("s_cmp_ge_u32 s2, 256")
    A("s_cbranch_scc1 L_end")
    A("s_load_dwordx16 s[16:31], s[0:1], 0")
    A("s_load_dwordx8 s[32:39], s[0:1], 64")
    A("s_memrealtime s[92:93]")
    A("v_lshrrev_b32 v1, 6, v0")
    A("v_and_b32 v0, 63, v0")
    A(f"v_mov_b32 v{V_FF}, 0xff")
    A("v_readfirstlane_b32 s3, v1")
    A("s_waitcnt lgkmcnt(0)")
    build_srd(R_K, P_K, 134217728)
    build_srd(R_V, P_V, 134217728)
    build_srd(R_WS, P_WS, WS_SIZE_ALL)
    C("clear the nonce mailbox, then an immediate barrier")
    A("v_mov_b32 v16, 0")
    A(f"v_mov_b32 v17, {L_NONCE}")
    A("ds_write_b32 v17, v16")
    A("s_waitcnt lgkmcnt(0)")
    A("s_barrier")
    A("s_cmp_ge_u32 s3, 4")
    A("s_cbranch_scc1 L_stream")
    build_srd(R_X, P_X, 2048)
    build_srd(R_WQ, P_WQ, 4194304)
    build_srd(R_WO, P_WO, 4194304)
    build_srd(R_WG, P_WG, 1835008)
    build_srd(R_WU, P_WU, 1835008)
    build_srd(R_WD, P_WD, 1835008)
    build_srd(R_OUT, P_OUT, 2048)
    build_srd(R_DBG, P_DBG, 256)

    def read_nonce(lbl):
        A(f"v_mov_b32 v17, {L_NONCE}")
        A("s_mov_b32 s93, 0")
        LBL(lbl)
        A("ds_read_b32 v16, v17")
        A("s_waitcnt lgkmcnt(0)")
        A("v_readfirstlane_b32 s92, v16")
        A("s_add_u32 s93, s93, 1")
        A("s_cmp_lg_u32 s92, 0")
        A(f"s_cbranch_scc1 {lbl}_ok")
        A(f"s_cmp_lt_u32 s93, {LIMIT*8}")
        A(f"s_cbranch_scc1 {lbl}")
        LBL(lbl + "_ok")
        for i in range(4):
            A(f"s_bfe_u32 s{S_NB+i}, s92, {(8 << 16) | (8*i)}")

    LBL("L_aux")
    stamp(0)
    sSTR, sROW0, sCOL, sSO, sSTEP, sXB = 4, 5, 6, 7, 8, 9
    sSL0, sBSTR, sDST = 11, 12, 13
    sCNT = 14
    sT0, sT1 = 88, 89
    C("x loads")
    A("v_lshlrev_b32 v1, 4, v0")
    A(f"buffer_load_dwordx4 v[2:5], v1, {srd(R_X)}, 0 offen")
    A(f"buffer_load_dwordx4 v[6:9], v1, {srd(R_X)}, 0 offen offset:1024")
    C("wave 3 acquires the launch nonce")
    A("s_cmp_lg_u32 s3, 3")
    A("s_cbranch_scc1 L_aux_nn")
    A("v_mov_b32 v14, 0")
    A(f"s_mov_b32 s{sCNT}, 0")
    A("s_cmp_ge_u32 s2, 8")
    A("s_cbranch_scc1 L_nonce")
    A("s_or_b32 s92, s92, 1")
    A("v_mov_b32 v16, s92")
    A("v_mov_b32 v17, 0")
    A("s_mov_b64 exec, 1")
    A(f"buffer_atomic_cmpswap v[16:17], v14, {srd(R_DBG)}, 0 offen sc0 sc1")
    A("s_mov_b64 exec, -1")
    A("s_waitcnt vmcnt(0)")
    A("v_readfirstlane_b32 s93, v16")
    A("s_nop 3")
    A("s_cmp_eq_u32 s93, 0")
    A("s_cselect_b32 s92, s92, s93")
    A("s_branch L_nonce_ok")
    LBL("L_nonce")
    A(f"buffer_load_dword v16, v14, {srd(R_DBG)}, 0 offen sc1")
    A("s_waitcnt vmcnt(0)")
    A("v_readfirstlane_b32 s92, v16")
    A("s_nop 3")
    A("s_cmp_lg_u32 s92, 0")
    A("s_cbranch_scc1 L_nonce_ok")
    A(f"s_add_u32 s{sCNT}, s{sCNT}, 1")
    A(f"s_cmp_lt_u32 s{sCNT}, {LIMIT}")
    A("s_cbranch_scc1 L_nonce")
    LBL("L_nonce_ok")
    A("v_mov_b32 v16, s92")
    A(f"v_mov_b32 v17, {L_NONCE}")
    A("ds_write_b32 v17, v16")
    LBL("L_aux_nn")
    C("tile parameters by wave")
    A(f"s_lshl_b32 s{sSL0}, s3, 12")
    A(f"s_add_u32 s{sSL0}, s{sSL0}, {L_SLOT}")
    A("s_cmp_ge_u32 s3, 2")
    A("s_cbranch_scc1 L_aux_gu")
    A(f"s_mov_b32 s{R_T}, s{R_WQ}")
    A(f"s_mov_b32 s{R_T+1}, s{R_WQ+1}")
    A(f"s_mov_b32 s{R_T+2}, 4194304")
    A(f"s_mov_b32 s{R_T+3}, 0x20000")
    A(f"s_mov_b32 s{sSTR}, 8192")
    A(f"s_and_b32 s{sT0}, s2, 3")
    A(f"s_lshl_b32 s{sT0}, s{sT0}, 1")
    A(f"s_add_u32 s{sT0}, s{sT0}, s3")
    A(f"s_lshl_b32 s{sROW0}, s{sT0}, 6")
    A(f"s_lshr_b32 s{sT1}, s2, 2")
    A(f"s_lshl_b32 s{sCOL}, s{sT1}, 7")
    A(f"s_mov_b32 s{sBSTR}, 32768")
    A(f"s_and_b32 s{sDST}, s2, 3")
    A(f"s_lshl_b32 s{sDST}, s{sDST}, 16")
    A(f"s_lshl_b32 s{sT1}, s{sT1}, 9")
    A(f"s_add_u32 s{sDST}, s{sDST}, s{sT1}")
    A(f"s_add_u32 s{sDST}, s{sDST}, {QP}")
    A("s_branch L_aux_tile")
    LBL("L_aux_gu")
    A("s_cmp_eq_u32 s3, 2")
    A(f"s_cselect_b32 s{R_T}, s{R_WG}, s{R_WU}")
    A(f"s_cselect_b32 s{R_T+1}, s{R_WG+1}, s{R_WU+1}")
    A(f"s_mov_b32 s{R_T+2}, 1835008")
    A(f"s_mov_b32 s{R_T+3}, 0x20000")
    A(f"s_mov_b32 s{sSTR}, 3584")
    A(f"s_and_b32 s{sT0}, s2, 7")
    A(f"s_lshl_b32 s{sROW0}, s{sT0}, 6")
    A(f"s_lshr_b32 s{sT1}, s2, 3")
    A(f"s_lshl_b32 s{sCOL}, s{sT1}, 7")
    A(f"s_mov_b32 s{sBSTR}, 14336")
    A(f"s_mul_i32 s{sDST}, s{sT0}, 28672")
    A(f"s_lshl_b32 s{sT1}, s{sT1}, 8")
    A(f"s_add_u32 s{sDST}, s{sDST}, s{sT1}")
    A(f"s_sub_u32 s{sT1}, s3, 2")
    A(f"s_mul_i32 s{sT1}, s{sT1}, 7168")
    A(f"s_add_u32 s{sDST}, s{sDST}, s{sT1}")
    A(f"s_add_u32 s{sDST}, s{sDST}, {GP}")
    LBL("L_aux_tile")
    VW = 64
    A("v_lshrrev_b32 v10, 3, v0")
    A("v_and_b32 v11, 7, v0")
    A(f"v_mul_lo_u32 v12, v10, s{sSTR}")
    A("v_lshl_add_u32 v12, v11, 4, v12")
    A(f"s_mul_i32 s{sSO}, s{sROW0}, s{sSTR}")
    A(f"s_add_u32 s{sSO}, s{sSO}, s{sCOL}")
    A(f"s_lshl_b32 s{sSTEP}, s{sSTR}, 3")

    def tile_loads():
        for t in range(8):
            A(f"buffer_load_dwordx4 {vr(VW+4*t,4)}, v12, {srd(R_T)}, s{sSO} offen{NT}")
            if t < 7:
                A(f"s_add_u32 s{sSO}, s{sSO}, s{sSTEP}")
    A("s_cmp_ge_u32 s3, 2")
    A("s_cbranch_scc1 L_aux_late")
    tile_loads()
    A("s_waitcnt vmcnt(8)")
    A("s_branch L_aux_ln")
    LBL("L_aux_late")
    A("s_waitcnt vmcnt(0)")
    LBL("L_aux_ln")
    C("layernorm")
    X0, X1 = 20, 28
    for i in range(4):
        A(f"v_lshlrev_b32 v{X0+2*i}, 16, v{2+i}")
        A(f"v_and_b32 v{X0+2*i+1}, 0xffff0000, v{2+i}")
        A(f"v_lshlrev_b32 v{X1+2*i}, 16, v{6+i}")
        A(f"v_and_b32 v{X1+2*i+1}, 0xffff0000, v{6+i}")
    for (X, s) in ((X0, 36), (X1, 37)):
        A(f"v_add_f32 v{s}, v{X}, v{X+1}")
        for i in range(2, 8):
            A(f"v_add_f32 v{s}, v{s}, v{X+i}")
    wave_allreduce([36, 37], [38, 39], "add")
    A("s_mov_b32 s88, 0x3b000000")
    A("v_mul_f32 v36, s88, v36")
    A("v_mul_f32 v37, s88, v37")
    for (X, m, s) in ((X0, 36, 40), (X1, 37, 41)):
        A(f"v_sub_f32 v42, v{X}, v{m}")
        A(f"v_mul_f32 v{s}, v42, v42")
        for i in range(1, 8):
            A(f"v_sub_f32 v42, v{X+i}, v{m}")
            A(f"v_fmac_f32 v{s}, v42, v42")
    wave_allreduce([40, 41], [38, 39], "add")
    A("v_mul_f32 v40, s88, v40")
    A("v_mul_f32 v41, s88, v41")
    round_bf16_pair(36, 37, 42)
    round_bf16_pair(40, 41, 42)
    A("s_mov_b32 s88, 0x3727c5ac")
    A("v_add_f32 v40, s88, v40")
    A("v_add_f32 v41, s88, v41")
    round_bf16_pair(40, 41, 42)
    A("v_sqrt_f32 v40, v40")
    A("v_sqrt_f32 v41, v41")
    A("s_nop 0")
    round_bf16_pair(40, 41, 42)
    A("v_rcp_f32 v44, v40")
    A("v_rcp_f32 v45, v41")
    XN = 48
    for i in range(8):
        A(f"v_sub_f32 v{X0+i}, v{X0+i}, v36")
        A(f"v_sub_f32 v{X1+i}, v{X1+i}, v37")
        round_bf16_pair(X0 + i, X1 + i, 42)
        for (X, sd, rc, dst) in ((X0, 40, 44, XN + 2 * i), (X1, 41, 45, XN + 2 * i + 1)):
            A(f"v_mul_f32 v{dst}, v{X+i}, v{rc}")
            A(f"v_fma_f32 v43, -v{dst}, v{sd}, v{X+i}")
            A(f"v_fmac_f32 v{dst}, v43, v{rc}")
        round_bf16_pair(XN + 2 * i, XN + 2 * i + 1, 42)
    A("v_lshlrev_b32 v1, 6, v0")
    A(f"v_add_u32 v1, {L_XN}, v1")
    for j in range(4):
        A(f"ds_write_b128 v1, {vr(XN+4*j,4)} offset:{16*j}")
    A("s_cmp_ge_u32 s3, 2")
    A("s_cbranch_scc0 L_aux_early")
    if FLATE:
        read_nonce("L_rn_ffn")
        A(f"v_mov_b32 v17, {L_FLAGS + 20}")
        A("s_mov_b32 s90, 0")
        LBL("L_iw")
        A("ds_read_b32 v16, v17")
        A("s_waitcnt lgkmcnt(0)")
        A("v_readfirstlane_b32 s88, v16")
        A("s_add_u32 s90, s90, 1")
        A("s_cmp_eq_u32 s88, s92")
        A("s_cbranch_scc1 L_iw_ok")
        A("s_sleep 4")
        A(f"s_cmp_lt_u32 s90, {LIMIT*8}")
        A("s_cbranch_scc1 L_iw")
        LBL("L_iw_ok")
    tile_loads()
    LBL("L_aux_early")
    A("s_waitcnt lgkmcnt(0)")
    A(f"s_lshl_b32 s{sXB}, s{sROW0}, 3")
    A(f"s_add_u32 s{sXB}, s{sXB}, {L_XN}")
    A("v_lshlrev_b32 v13, 3, v10")
    A(f"v_add_u32 v13, s{sXB}, v13")
    XP = 20
    for t in range(8):
        A(f"ds_read_b64 {vr(XP+2*t,2)}, v13 offset:{64*t}")
    A("s_waitcnt lgkmcnt(0)")
    AC0, AC1 = 36, 44
    for t in range(8):
        A(f"s_waitcnt vmcnt({7-t})")
        for i in range(4):
            w = VW + 4 * t + i
            A(f"v_lshlrev_b32 v52, 16, v{w}")
            A(f"v_and_b32 v53, 0xffff0000, v{w}")
            op = "v_mul_f32" if t == 0 else "v_fmac_f32"
            A(f"{op} v{AC0+2*i}, v52, v{XP+2*t}")
            A(f"{op} v{AC0+2*i+1}, v53, v{XP+2*t}")
            A(f"{op} v{AC1+2*i}, v52, v{XP+2*t+1}")
            A(f"{op} v{AC1+2*i+1}, v53, v{XP+2*t+1}")
    stamp(1)
    C("in-wave slot reduce (own 4 KiB slot area, no barrier)")
    A("v_lshlrev_b32 v1, 9, v10")
    A("v_lshl_add_u32 v1, v11, 5, v1")
    A(f"v_add_u32 v1, s{sSL0}, v1")
    A(f"ds_write_b128 v1, {vr(AC0,4)}")
    A(f"ds_write_b128 v1, {vr(AC0+4,4)} offset:16")
    A(f"ds_write_b128 v1, {vr(AC1,4)} offset:256")
    A(f"ds_write_b128 v1, {vr(AC1+4,4)} offset:272")
    A("s_waitcnt lgkmcnt(0)")
    A("v_and_b32 v2, 31, v0")
    A("v_lshrrev_b32 v3, 5, v0")
    A("v_lshlrev_b32 v1, 4, v2")
    A("v_lshl_add_u32 v1, v3, 11, v1")
    A(f"v_add_u32 v1, s{sSL0}, v1")
    for s in range(4):
        A(f"ds_read_b128 {vr(64+4*s,4)}, v1 offset:{512*s}")
    A("s_waitcnt lgkmcnt(0)")
    for i in range(4):
        A(f"v_add_f32 v{64+i}, v{64+i}, v{68+i}")
        A(f"v_add_f32 v{72+i}, v{72+i}, v{76+i}")
        A(f"v_add_f32 v{64+i}, v{64+i}, v{72+i}")
    swap_allreduce([64, 65, 66, 67], [68, 69, 70, 71], "add", which=("32",))
    read_nonce("L_rn_aux")
    C("store tagged partials")
    A("v_lshrrev_b32 v3, 4, v2")
    A(f"v_mul_lo_u32 v3, v3, s{sBSTR}")
    A("v_and_b32 v4, 15, v2")
    A("s_cmp_ge_u32 s3, 2")
    A("s_cbranch_scc1 L_aux_st_gu")
    A("v_lshlrev_b32 v5, 4, v2")
    A(f"v_add_u32 v5, {L_PX}, v5")
    A(f"v_mov_b32 v6, {L_FLAGS + 16}")
    A("v_mov_b32 v7, s92")
    A("s_cmp_eq_u32 s3, 0")
    A("s_cbranch_scc1 L_aux_st_q0")
    C("wave 1: hand the partial to wave 0 through LDS")
    A("ds_write_b128 v5, v[64:67]")
    A("s_waitcnt lgkmcnt(0)")
    A("ds_write_b32 v6, v7")
    A("s_branch L_aux_st_skip")
    LBL("L_aux_st_q0")
    A("s_mov_b32 s90, 0")
    LBL("L_px")
    A("ds_read_b32 v8, v6")
    A("s_waitcnt lgkmcnt(0)")
    A("v_readfirstlane_b32 s88, v8")
    A("s_add_u32 s90, s90, 1")
    A("s_cmp_eq_u32 s88, s92")
    A("s_cbranch_scc1 L_px_ok")
    A(f"s_cmp_lt_u32 s90, {LIMIT*8}")
    A("s_cbranch_scc1 L_px")
    LBL("L_px_ok")
    A("ds_read_b128 v[68:71], v5")
    A("s_waitcnt lgkmcnt(0)")
    A("v_add_f32 v64, v64, v68")
    A("v_add_f32 v65, v65, v69")
    A("v_add_f32 v68, v66, v70")
    A("v_add_f32 v69, v67, v71")
    A("v_mov_b32 v66, s92")
    A("v_mov_b32 v67, s92")
    A("v_mov_b32 v70, s92")
    A("v_mov_b32 v71, s92")
    A("v_lshl_add_u32 v3, v4, 5, v3")
    A("s_mov_b32 exec_hi, 0")
    A(f"buffer_store_dwordx4 v[64:67], v3, {srd(R_WS)}, s{sDST} offen sc1")
    A(f"buffer_store_dwordx4 v[68:71], v3, {srd(R_WS)}, s{sDST} offen offset:16 sc1")
    A("s_mov_b64 exec, -1")
    A("s_branch L_aux_st_skip")
    LBL("L_aux_st_gu")
    tag_pack(64)
    A("v_lshl_add_u32 v3, v4, 4, v3")
    A("s_cmp_ge_u32 s2, 224")
    A("s_cbranch_scc1 L_aux_st_skip")
    A("s_mov_b32 exec_hi, 0")
    A(f"buffer_store_dwordx4 v[64:67], v3, {srd(R_WS)}, s{sDST} offen sc1")
    A("s_mov_b64 exec, -1")
    LBL("L_aux_st_skip")
    stamp(2)
    sHKV, sB, sH = 4, 5, 6
    A(f"s_lshr_b32 s{sHKV}, s2, 5")
    A(f"s_bfe_u32 s{sB}, s2, 0x10004")
    A(f"s_and_b32 s{sH}, s2, 31")
    A(f"s_mov_b32 s{sCNT}, 0")
    A("v_lshlrev_b32 v12, 10, v10")
    A("v_lshl_add_u32 v12, v11, 4, v12")
    A(f"s_lshl_b32 s89, s{sHKV}, 7")
    A("s_cmp_ge_u32 s3, 2")
    A("s_cbranch_scc1 L_aux_ffn")
    VWO = 128
    C("q gather (waves 0,1): sentinel poll, then full gather")
    A("v_bfe_u32 v1, v0, 2, 2")
    A("v_lshlrev_b32 v1, 16, v1")
    A("v_and_b32 v2, 3, v0")
    A("v_lshl_add_u32 v1, v2, 9, v1")
    A(f"s_lshl_b32 s88, s{sB}, 15")
    A(f"s_lshl_b32 s89, s{sHKV}, 12")
    A("s_add_u32 s88, s88, s89")
    A("s_lshl_b32 s89, s3, 11")
    A("s_add_u32 s88, s88, s89")
    A(f"s_add_u32 s90, s88, {QP}")
    if QPOLL == 2:
        LBL("L_qs")
        A(f"buffer_load_dwordx4 v[4:7], v1, {srd(R_WS)}, s90 offen offset:496 sc1")
        A("s_waitcnt vmcnt(0)")
        A("v_xor_b32 v4, s92, v6")
        A("v_xor_b32 v5, s92, v7")
        A("v_or_b32 v4, v4, v5")
        retry_tail("L_qs", 4, sCNT)
    A("v_lshlrev_b32 v2, 5, v0")
    LBL("L_qg")
    A("s_mov_b32 s88, s90")
    for ks in range(4):
        A(f"buffer_load_dwordx4 {vr(64+8*ks,4)}, v2, {srd(R_WS)}, s88 offen sc1")
        A(f"buffer_load_dwordx4 {vr(68+8*ks,4)}, v2, {srd(R_WS)}, s88 offen offset:16 sc1")
        if ks < 3:
            A("s_add_u32 s88, s88, 65536")
    A("s_waitcnt vmcnt(0)")
    for k in range(8):
        b = 64 + 4 * k
        A(f"v_xor_b32 v5, s92, v{b+2}")
        A(f"v_xor_b32 v6, s92, v{b+3}")
        if k == 0:
            A("v_or_b32 v4, v5, v6")
        else:
            A("v_or3_b32 v4, v4, v5, v6")
    retry_tail("L_qg", 4, sCNT)
    for (d, o) in ((64, 0), (65, 1), (68, 4), (69, 5)):
        A(f"v_add_f32 v{d}, v{64+o}, v{72+o}")
        A(f"v_add_f32 v{80+o}, v{80+o}, v{88+o}")
        A(f"v_add_f32 v{d}, v{d}, v{80+o}")
    A("v_cvt_pk_bf16_f32 v4, v64, v65")
    A("v_cvt_pk_bf16_f32 v5, v68, v69")
    A("s_lshl_b32 s88, s3, 9")
    A(f"s_add_u32 s88, s88, {L_Q}")
    A("v_lshlrev_b32 v3, 3, v0")
    A("v_add_u32 v3, s88, v3")
    A("ds_write_b64 v3, v[4:5]")
    A("s_lshl_b32 s88, s3, 2")
    A(f"s_add_u32 s88, s88, {L_FLAGS + 24}")
    A("v_mov_b32 v6, s88")
    A("v_mov_b32 v7, s92")
    A("s_waitcnt lgkmcnt(0)")
    A("ds_write_b32 v6, v7")
    stamp(3)
    A("s_cmp_lg_u32 s3, 0")
    A("s_cbranch_scc1 L_end")
    C("wave 0: wo tile loads (128 rows x 64 cols)")
    A(f"s_lshl_b32 s89, s{sHKV}, 7")
    A(f"s_lshl_b32 s88, s{sH}, 17")
    A("s_add_u32 s88, s88, s89")
    for t in range(16):
        A(f"buffer_load_dwordx4 {vr(VWO+4*t,4)}, v12, {srd(R_WO)}, s88 offen{NT}")
        if t < 15:
            A("s_add_u32 s88, s88, 8192")
    A("s_waitcnt vmcnt(0)")
    stamp(4)
    C("wave 0: stage wo through LDS -> MFMA B fragments")
    BF = 64
    A("s_movk_i32 s88, 144")
    A("v_mul_lo_u32 v1, v10, s88")
    A("v_lshl_add_u32 v1, v11, 4, v1")
    A(f"v_add_u32 v1, {L_WT}, v1")
    A("v_lshrrev_b32 v2, 4, v0")
    A("v_bfe_u32 v3, v0, 2, 2")
    A("v_lshl_add_u32 v2, v2, 3, v3")
    A("v_and_b32 v3, 3, v0")
    A("v_mul_lo_u32 v2, v2, s88")
    A("v_lshl_add_u32 v2, v3, 3, v2")
    A(f"v_add_u32 v2, {L_WT}, v2")
    for p in range(4):
        hb = 0
        if p:
            A("s_waitcnt lgkmcnt(0)")
        for t in range(4):
            A(f"ds_write_b128 v1, {vr(VWO+4*(4*p+t),4)} offset:{hb + 1152*t}")
        A("s_waitcnt lgkmcnt(0)")
        for nt in range(4):
            base = BF + 16 * p + 4 * nt
            A(f"ds_read_b64_tr_b16 {vr(base,2)}, v2 offset:{hb + 32*nt}")
            A(f"ds_read_b64_tr_b16 {vr(base+2,2)}, v2 offset:{hb + 576 + 32*nt}")
    A("s_waitcnt lgkmcnt(0)")
    stamp(5)
    C("attention partial gather, both batches")
    sHK2 = 7
    A(f"s_lshr_b32 s{sHK2}, s{sH}, 2")
    A(f"s_mov_b32 s{sCNT}, 0")
    A(f"s_lshl_b32 s88, s{sHK2}, 7")
    A(f"s_and_b32 s89, s{sH}, 3")
    A("s_add_u32 s88, s88, s89")
    A(f"s_mul_i32 s88, s88, {AP_REC}")
    A(f"s_add_u32 s90, s88, {AP}")
    A("v_and_b32 v1, 15, v0")
    A(f"s_mov_b32 s89, {4*AP_REC}")
    A("v_mul_lo_u32 v2, v1, s89")
    A("v_lshrrev_b32 v6, 5, v0")
    A("v_and_b32 v7, 31, v0")
    A(f"s_mov_b32 s89, {8*4*AP_REC}")
    A("v_mul_lo_u32 v8, v6, s89")
    A("v_lshl_add_u32 v8, v7, 4, v8")
    G = 128
    LBL("L_as")
    A(f"s_add_u32 s88, s90, {16*4*AP_REC}")
    A(f"buffer_load_dwordx4 {vr(G,4)}, v2, {srd(R_WS)}, s90 offen offset:512 sc1")
    A(f"buffer_load_dwordx4 {vr(G+36,4)}, v2, {srd(R_WS)}, s88 offen offset:512 sc1")
    A("s_waitcnt vmcnt(0)")
    tag_check([G, G + 36], 4, 5, 9)
    retry_tail("L_as", 4, sCNT)
    LBL("L_ag")
    A("s_mov_b32 s88, s90")
    for b in range(2):
        A(f"buffer_load_dwordx4 {vr(G+36*b,4)}, v2, {srd(R_WS)}, s88 offen offset:512 sc1")
        for t in range(8):
            A(f"buffer_load_dwordx4 {vr(G+36*b+4+4*t,4)}, v8, {srd(R_WS)}, s88 offen sc1")
            A(f"s_add_u32 s88, s88, {4*AP_REC}")
        if b == 0:
            A(f"s_add_u32 s88, s88, {8*4*AP_REC}")
    A("s_waitcnt vmcnt(0)")
    tag_check([G + 4 * k for k in range(18)], 4, 5, 9)
    retry_tail("L_ag", 4, sCNT)
    tag_strip([G + 4 * k for k in range(18)])
    stamp(6)
    A(f"v_mov_b32 v20, v{G}")
    A(f"v_mov_b32 v21, v{G+36}")
    row_allreduce([20, 21], "max")
    A("s_mov_b32 s88, 0x3fb8aa3b")
    for b in range(2):
        A(f"v_sub_f32 v{22+b}, v{G+36*b}, v{20+b}")
        A(f"v_mul_f32 v{22+b}, s88, v{22+b}")
        A(f"v_exp_f32 v{22+b}, v{22+b}")
    A("s_nop 0")
    for b in range(2):
        A(f"v_mul_f32 v{24+b}, v{G+36*b+1}, v{22+b}")
    row_allreduce([24, 25], "add")
    A("v_lshlrev_b32 v9, 5, v6")
    for t in range(8):
        A(f"v_add_u32 v{26+t}, {4*t}, v9")
    for b in range(2):
        for t in range(8):
            A(f"ds_bpermute_b32 v{34+8*b+t}, v{26+t}, v{22+b}")
    A("s_waitcnt lgkmcnt(0)")
    for b in range(2):
        for i in range(4):
            A(f"v_mul_f32 v{50+4*b+i}, v{G+36*b+4+i}, v{34+8*b}")
        for t in range(1, 8):
            for i in range(4):
                A(f"v_fmac_f32 v{50+4*b+i}, v{G+36*b+4+4*t+i}, v{34+8*b+t}")
    swap_allreduce(list(range(50, 58)), list(range(26, 34)), "add", which=("32",))
    A("v_rcp_f32 v20, v24")
    A("v_rcp_f32 v21, v25")
    A("s_nop 0")
    for b in range(2):
        for i in range(4):
            r = 50 + 4 * b + i
            A(f"v_mul_f32 v26, v{r}, v{20+b}")
            A(f"v_fma_f32 v27, -v26, v{24+b}, v{r}")
            A(f"v_fma_f32 v{r}, v27, v{20+b}, v26")
    for b in range(2):
        A(f"v_cvt_pk_bf16_f32 v{28+2*b}, v{50+4*b}, v{51+4*b}")
        A(f"v_cvt_pk_bf16_f32 v{29+2*b}, v{52+4*b}, v{53+4*b}")
    A("v_lshlrev_b32 v3, 1, v7")
    A(f"v_add_u32 v3, {L_O}, v3")
    for b in range(2):
        A(f"ds_write_b16 v3, v{28+2*b} offset:{256*b}")
        A(f"ds_write_b16_d16_hi v3, v{28+2*b} offset:{256*b+64}")
        A(f"ds_write_b16 v3, v{29+2*b} offset:{256*b+128}")
        A(f"ds_write_b16_d16_hi v3, v{29+2*b} offset:{256*b+192}")
    A("v_and_b32 v3, 1, v0")
    A("v_lshlrev_b32 v3, 8, v3")
    A("v_lshrrev_b32 v4, 4, v0")
    A("v_lshl_add_u32 v3, v4, 4, v3")
    A(f"v_add_u32 v3, {L_O}, v3")
    A("s_waitcnt lgkmcnt(0)")
    AF = 32
    for s in range(4):
        A(f"ds_read_b128 {vr(AF+4*s,4)}, v3 offset:{64*s}")
    A("s_waitcnt lgkmcnt(0)")
    AC = 48
    for s in range(4):
        for nt in range(4):
            src = "0" if s == 0 else vr(AC + 4 * nt, 4)
            A(f"v_mfma_f32_16x16x32_bf16 {vr(AC+4*nt,4)}, {vr(AF+4*s,4)}, {vr(BF+16*s+4*nt,4)}, {src}")
    A("s_nop 7")
    A("s_nop 1")
    stamp(7)
    for b in range(2):
        for nt in range(4):
            A(f"v_mov_b32 v{4+4*b+nt}, v{AC+4*nt+b}")
    tag_pack(4)
    tag_pack(8)
    A("v_lshlrev_b32 v1, 4, v0")
    A("s_lshl_b32 s88, s2, 9")
    A(f"s_add_u32 s88, s88, {OPA}")
    A("s_mov_b64 exec, 0xffff")
    A(f"buffer_store_dwordx4 v[4:7], v1, {srd(R_WS)}, s88 offen sc1")
    A(f"buffer_store_dwordx4 v[8:11], v1, {srd(R_WS)}, s88 offen offset:256 sc1")
    A("s_mov_b64 exec, -1")
    stamp(8)
    C("phase 4: outputs b=(w>>4)&1, cols cs*64 + (w&15) + 16*nt")
    A("s_and_b32 s88, s2, 15")
    A("s_lshl_b32 s88, s88, 1")
    A(f"s_lshl_b32 s89, s{sHKV}, 7")
    A("s_add_u32 s88, s88, s89")
    A(f"s_lshl_b32 s89, s{sB}, 10")
    A("s_add_u32 s91, s88, s89")
    A("v_mov_b32 v20, s91")
    for nt in range(4):
        A(f"buffer_load_ushort v{22+nt}, v20, {srd(R_X)}, 0 offen offset:{32*nt}")
    A("v_and_b32 v1, 31, v0")
    A("v_lshlrev_b32 v1, 9, v1")
    A("v_lshrrev_b32 v2, 5, v0")
    A("v_lshl_add_u32 v1, v2, 17, v1")
    A(f"s_lshl_b32 s88, s{sHKV}, 14")
    A(f"s_lshl_b32 s89, s{sB}, 8")
    A("s_add_u32 s88, s88, s89")
    A("s_and_b32 s89, s2, 15")
    A("s_lshl_b32 s89, s89, 4")
    A("s_add_u32 s88, s88, s89")
    A(f"s_add_u32 s88, s88, {OPA}")
    A(f"s_mov_b32 s{sCNT}, 0")
    LBL("L_og")
    A(f"buffer_load_dwordx4 v[4:7], v1, {srd(R_WS)}, s88 offen sc1")
    A("s_waitcnt vmcnt(0)")
    tag_check([4], 8, 9, 10)
    retry_tail("L_og", 8, sCNT)
    tag_strip([4])
    stamp(9)
    row_allreduce([4, 5, 6, 7], "add")
    swap_allreduce([4, 5, 6, 7], [8, 9, 10, 11], "add", which=("16",))
    round_bf16_pair(4, 5, 12)
    round_bf16_pair(6, 7, 12)
    for i in range(4):
        A(f"v_mov_b32 v{8+i}, v{4+i}")
    A("s_nop 1")
    for i in range(4):
        A(f"v_permlane32_swap_b32 v{4+i}, v{8+i}")
    A("s_nop 1")
    for i in range(4):
        A(f"v_lshlrev_b32 v{22+i}, 16, v{22+i}")
        A(f"v_add_f32 v{4+i}, v{22+i}, v{4+i}")
    round_bf16_pair(4, 5, 12)
    round_bf16_pair(6, 7, 12)
    for i in range(4):
        A(f"v_add_f32 v{4+i}, v{4+i}, v{8+i}")
    A("v_cvt_pk_bf16_f32 v12, v4, v5")
    A("v_cvt_pk_bf16_f32 v13, v6, v7")
    A("s_mov_b64 exec, 1")
    A(f"buffer_store_short v12, v20, {srd(R_OUT)}, 0 offen")
    A(f"buffer_store_short_d16_hi v12, v20, {srd(R_OUT)}, 0 offen offset:32")
    A(f"buffer_store_short v13, v20, {srd(R_OUT)}, 0 offen offset:64")
    A(f"buffer_store_short_d16_hi v13, v20, {srd(R_OUT)}, 0 offen offset:96")
    stamp(10)
    stamp_store(0, 11)
    A("s_branch L_end")

    LBL("L_aux_ffn")
    VWD = 128
    A(f"s_mul_i32 s88, s{sH}, 57344")
    A("s_add_u32 s88, s88, s89")
    for t in range(7):
        A(f"buffer_load_dwordx4 {vr(VWD+4*t,4)}, v12, {srd(R_WD)}, s88 offen{NT}")
        if t < 6:
            A("s_add_u32 s88, s88, 8192")
    A(f"v_mov_b32 v5, {L_FLAGS + 24}")
    A("s_mov_b32 s90, 0")
    LBL("L_fw")
    A("ds_read_b32 v6, v5")
    A("s_waitcnt lgkmcnt(0)")
    A("v_readfirstlane_b32 s88, v6")
    A("s_add_u32 s90, s90, 1")
    A("s_cmp_eq_u32 s88, s92")
    A("s_cbranch_scc1 L_fw_ok")
    A("s_sleep 4")
    A(f"s_cmp_lt_u32 s90, {LIMIT*8}")
    A("s_cbranch_scc1 L_fw")
    LBL("L_fw_ok")
    A("s_mov_b64 exec, 0xffff")
    A("v_min_u32 v1, 13, v0")
    A("v_lshlrev_b32 v2, 4, v1")
    A("s_sub_u32 s89, s3, 2")
    A("s_mul_i32 s88, s89, 14336")
    A(f"s_mul_i32 s91, s{sH}, 224")
    A("s_add_u32 s88, s88, s91")
    A(f"s_add_u32 s90, s88, {GP}")
    LBL("L_hg")
    A("s_mov_b32 s88, s90")
    for ks in range(8):
        A(f"buffer_load_dwordx4 {vr(64+8*ks,4)}, v2, {srd(R_WS)}, s88 offen sc1")
        A("s_add_u32 s91, s88, 7168")
        A(f"buffer_load_dwordx4 {vr(64+8*ks+4,4)}, v2, {srd(R_WS)}, s91 offen sc1")
        if ks < 7:
            A("s_add_u32 s88, s88, 28672")
    A("s_waitcnt vmcnt(0)")
    tag_check([64 + 4 * k for k in range(16)], 4, 5, 6)
    retry_tail("L_hg", 4, sCNT)
    tag_strip([64 + 4 * k for k in range(16)])
    for ks in range(1, 8):
        for i in range(8):
            A(f"v_add_f32 v{64+i}, v{64+i}, v{64+8*ks+i}")
    for i in range(0, 8, 2):
        round_bf16_pair(64 + i, 65 + i, 42)
    A("s_mov_b32 s88, 0xbfb8aa3b")
    for i in range(4):
        A(f"v_mul_f32 v72, s88, v{64+i}")
        A("v_exp_f32 v72, v72")
        A("s_nop 0")
        A("v_add_f32 v72, 1.0, v72")
        A("v_rcp_f32 v73, v72")
        A("s_nop 0")
        A(f"v_mul_f32 v74, v{64+i}, v73")
        A(f"v_fma_f32 v75, -v74, v72, v{64+i}")
        A("v_fmac_f32 v74, v75, v73")
        A(f"v_mov_b32 v{64+i}, v74")
    round_bf16_pair(64, 65, 42)
    round_bf16_pair(66, 67, 42)
    for i in range(4):
        A(f"v_mul_f32 v{64+i}, v{64+i}, v{68+i}")
    round_bf16_pair(64, 65, 42)
    round_bf16_pair(66, 67, 42)
    A("v_lshlrev_b32 v3, 4, v0")
    A(f"v_add_u32 v3, s{sSL0}, v3")
    A("ds_write_b128 v3, v[64:67] offset:2048")
    A("s_mov_b64 exec, -1")
    A("s_waitcnt lgkmcnt(0)")
    A("v_lshlrev_b32 v3, 2, v10")
    A(f"v_add_u32 v3, s{sSL0}, v3")
    for t in range(7):
        A(f"ds_read_b32 v{20+t}, v3 offset:{2048+32*t}")
    A("s_waitcnt lgkmcnt(0)")
    for t in range(7):
        for i in range(4):
            w = VWD + 4 * t + i
            A(f"v_lshlrev_b32 v52, 16, v{w}")
            A(f"v_and_b32 v53, 0xffff0000, v{w}")
            op = "v_mul_f32" if t == 0 else "v_fmac_f32"
            A(f"{op} v{36+2*i}, v52, v{20+t}")
            A(f"{op} v{37+2*i}, v53, v{20+t}")
    A("v_lshlrev_b32 v1, 8, v10")
    A("v_lshl_add_u32 v1, v11, 5, v1")
    A(f"v_add_u32 v1, s{sSL0}, v1")
    A("ds_write_b128 v1, v[36:39]")
    A("ds_write_b128 v1, v[40:43] offset:16")
    A("s_waitcnt lgkmcnt(0)")
    A("v_lshlrev_b32 v1, 2, v0")
    A(f"v_add_u32 v1, s{sSL0}, v1")
    for rr in range(8):
        A(f"ds_read_b32 v{20+rr}, v1 offset:{256*rr}")
    A("s_waitcnt lgkmcnt(0)")
    for rr in range(1, 8):
        A(f"v_add_f32 v20, v20, v{20+rr}")
    A("ds_write_b32 v1, v20 offset:2560")
    A("s_waitcnt lgkmcnt(0)")
    for nt in range(4):
        A(f"ds_read_b32 v{4+nt}, v1 offset:{2560+64*nt}")
    A("s_waitcnt lgkmcnt(0)")
    tag_pack(4)
    A("v_lshlrev_b32 v1, 4, v0")
    A("s_lshl_b32 s88, s2, 9")
    A("s_lshl_b32 s91, s89, 8")
    A("s_add_u32 s88, s88, s91")
    A(f"s_add_u32 s88, s88, {OPB}")
    A("s_mov_b64 exec, 0xffff")
    A(f"buffer_store_dwordx4 v[4:7], v1, {srd(R_WS)}, s88 offen sc1")
    A("s_branch L_end")

    LBL("L_stream")
    stamp(0)
    sSW, sKV, sLB = 4, 5, 6
    A(f"s_sub_u32 s{sSW}, s3, 4")
    A("s_lshr_b32 s88, s2, 5")
    A("s_bfe_u32 s89, s2, 0x10004")
    A("s_lshl_b32 s89, s89, 3")
    A("s_add_u32 s88, s88, s89")
    A(f"s_lshl_b32 s{sKV}, s88, 23")
    A("s_and_b32 s88, s2, 15")
    A("s_lshl_b32 s88, s88, 16")
    A(f"s_add_u32 s{sKV}, s{sKV}, s88")
    A(f"s_lshl_b32 s{sLB}, s{sSW}, 14")
    A(f"s_lshl_b32 s88, s{sSW}, 10")
    A(f"s_add_u32 s{sKV}, s{sKV}, s88")
    A(f"s_add_u32 s{sKV}, s{sKV}, 7340032")
    A("v_lshrrev_b32 v1, 4, v0")
    A("v_and_b32 v2, 15, v0")
    for tt in range(4):
        A(f"v_add_u32 v3, {4*tt}, v1")
        A("v_xor_b32 v3, v3, v2")
        A("v_lshlrev_b32 v3, 4, v3")
        A(f"v_lshl_add_u32 v{4+tt}, v1, 8, v3")
    for tt in range(2):
        A(f"v_add_u32 v3, {4*tt}, v1")
        A("v_lshlrev_b32 v3, 1, v3")
        A("v_xor_b32 v3, v3, v2")
        A("v_lshlrev_b32 v3, 4, v3")
        A(f"v_lshl_add_u32 v{8+tt}, v1, 8, v3")
    n_issued = 0
    for (R, LB, isV) in ((R_K, L_K, 0), (R_V, L_V, 1)):
        A(f"s_mov_b32 s88, s{sKV}")
        A(f"s_add_u32 s89, s{sLB}, {LB}")
        for t in range(16):
            A("s_mov_b32 m0, s89")
            if n_issued >= DEPTH:
                A(f"s_waitcnt vmcnt({DEPTH-1})")
            else:
                A("s_nop 0")
            vo = (8 + (t & 1)) if isV else (4 + (t & 3))
            A(f"buffer_load_dwordx4 v{vo}, {srd(R)}, s88 offen{NT} lds")
            n_issued += 1
            if FLATE and n_issued == FLATE:
                read_nonce("L_rn_str0")
                A(f"v_mov_b32 v17, {L_FLAGS + 20}")
                A("v_mov_b32 v16, s92")
                A("ds_write_b32 v17, v16")
            A("s_add_u32 s88, s88, 4096")
            A("s_add_u32 s89, s89, 1024")
    stamp(1)
    read_nonce("L_rn_str")
    C("read addresses")
    for s in range(4):
        A(f"v_add_u32 v3, {4*s}, v1")
        A("v_xor_b32 v3, v3, v2")
        A("v_lshlrev_b32 v3, 4, v3")
        A("v_lshl_add_u32 v3, v2, 8, v3")
        A(f"v_add_u32 v{10+s}, s{sLB}, v3")
    A("v_bfe_u32 v14, v0, 2, 2")
    A("v_and_b32 v19, 3, v0")
    A("v_lshl_add_u32 v16, v1, 2, v14")
    A("v_and_b32 v17, 7, v16")
    A("v_lshlrev_b32 v16, 8, v16")
    A("v_lshl_add_u32 v16, v19, 3, v16")
    A(f"v_add_u32 v16, s{sLB}, v16")
    A(f"v_add_u32 v16, {L_V}, v16")
    for nt in range(8):
        A(f"v_xor_b32 v3, {nt}, v17")
        A(f"v_lshl_add_u32 v{20+nt}, v3, 5, v16")
    A("v_and_b32 v3, 3, v2")
    A("v_lshlrev_b32 v3, 8, v3")
    A("v_lshl_add_u32 v3, v1, 4, v3")
    A(f"v_add_u32 v18, {L_Q}, v3")
    KF = 64
    VF = 128
    A("s_waitcnt vmcnt(16)")
    for T in range(4):
        for s in range(4):
            A(f"ds_read_b128 {vr(KF+16*T+4*s,4)}, v{10+s} offset:{4096*T}")
    A("s_waitcnt vmcnt(0)")
    stamp(2)
    for u in range(2):
        for nt in range(8):
            base = VF + 32 * u + 4 * nt
            A(f"ds_read_b64_tr_b16 {vr(base,2)}, v{20+nt} offset:{8192*u}")
            A(f"ds_read_b64_tr_b16 {vr(base+2,2)}, v{20+nt} offset:{8192*u+4096}")
    A(f"v_mov_b32 v5, {L_FLAGS + 24}")
    A("s_mov_b32 s90, 0")
    LBL("L_qw")
    A("ds_read_b64 v[32:33], v5")
    A("s_waitcnt lgkmcnt(0)")
    A("v_xor_b32 v32, s92, v32")
    A("v_xor_b32 v33, s92, v33")
    A("v_or_b32 v32, v32, v33")
    A("v_cmp_ne_u32 vcc, 0, v32")
    A("s_nop 4")
    A("s_cbranch_vccz L_qw_ok")
    A("s_sleep 1")
    A("s_add_u32 s90, s90, 1")
    A(f"s_cmp_lt_u32 s90, {LIMIT*8}")
    A("s_cbranch_scc1 L_qw")
    LBL("L_qw_ok")
    stamp(3)
    QF = 32
    for s in range(4):
        A(f"ds_read_b128 {vr(QF+4*s,4)}, v18 offset:{64*s}")
    A("s_waitcnt lgkmcnt(0)")
    SS = 48
    for T in range(4):
        for s in range(4):
            src = "0" if s == 0 else vr(SS + 4 * T, 4)
            A(f"v_mfma_f32_16x16x32_bf16 {vr(SS+4*T,4)}, {vr(KF+16*T+4*s,4)}, {vr(QF+4*s,4)}, {src}")
    A("s_nop 7")
    A("s_nop 1")
    C("softmax")
    A("s_mov_b32 s88, 0x3db504f3")
    for j in range(0, 16, 2):
        round_bf16_pair(SS + j, SS + j + 1, 3)
        A(f"v_mul_f32 v{SS+j}, s88, v{SS+j}")
        A(f"v_mul_f32 v{SS+j+1}, s88, v{SS+j+1}")
        round_bf16_pair(SS + j, SS + j + 1, 3)
    A(f"v_max3_f32 v28, v{SS}, v{SS+1}, v{SS+2}")
    for j in range(3, 15, 2):
        A(f"v_max3_f32 v28, v28, v{SS+j}, v{SS+j+1}")
    A(f"v_max_f32 v28, v28, v{SS+15}")
    swap_allreduce([28], [29], "max")
    A("s_mov_b32 s88, 0x3fb8aa3b")
    A("v_mul_f32 v30, s88, v28")
    for j in range(16):
        A(f"v_fma_f32 v{SS+j}, v{SS+j}, s88, -v30")
    for j in range(16):
        A(f"v_exp_f32 v{SS+j}, v{SS+j}")
    A("s_nop 0")
    A(f"v_add_f32 v29, v{SS}, v{SS+1}")
    for j in range(2, 16):
        A(f"v_add_f32 v29, v29, v{SS+j}")
    swap_allreduce([29], [30], "add")
    PP = 32
    for j in range(8):
        A(f"v_cvt_pk_bf16_f32 v{PP+j}, v{SS+2*j}, v{SS+2*j+1}")
    stamp(4)
    C("PV")
    OA = 192
    A("s_nop 1")
    for u in range(2):
        for nt in range(8):
            src = "0" if u == 0 else vr(OA + 4 * nt, 4)
            A(f"v_mfma_f32_16x16x32_bf16 {vr(OA+4*nt,4)}, {vr(PP+4*u,4)}, {vr(VF+32*u+4*nt,4)}, {src}")
    A("s_nop 7")
    A("s_nop 1")
    stamp(5)
    C("write wave partial to own K region, then flag")
    A("v_lshlrev_b32 v3, 4, v0")
    A(f"v_add_u32 v3, s{sLB}, v3")
    A("v_lshlrev_b32 v4, 3, v0")
    A(f"v_add_u32 v4, s{sLB}, v4")
    A("s_mov_b64 exec, 0xffff")
    for nt in range(8):
        A(f"ds_write_b128 v3, {vr(OA+4*nt,4)} offset:{256*nt}")
    A("s_mov_b64 exec, 15")
    A("ds_write_b64 v4, v[28:29] offset:2048")
    A("s_mov_b64 exec, -1")
    A("v_mov_b32 v4, s92")
    A(f"s_lshl_b32 s88, s{sSW}, 2")
    A(f"s_add_u32 s88, s88, {L_FLAGS}")
    A("v_mov_b32 v5, s88")
    A("s_waitcnt lgkmcnt(0)")
    A("ds_write_b32 v5, v4")
    A(f"v_mov_b32 v5, {L_FLAGS}")
    A("s_mov_b32 s90, 0")
    LBL("L_sf")
    A("ds_read_b128 v[32:35], v5")
    A("s_waitcnt lgkmcnt(0)")
    A("v_xor_b32 v32, v32, v4")
    A("v_xor_b32 v33, v33, v4")
    A("v_xor_b32 v34, v34, v4")
    A("v_xor_b32 v35, v35, v4")
    A("v_or3_b32 v32, v32, v33, v34")
    A("v_or_b32 v32, v32, v35")
    A("v_cmp_ne_u32 vcc, 0, v32")
    A("s_nop 4")
    A("s_cbranch_vccz L_sf_ok")
    A("s_add_u32 s90, s90, 1")
    A(f"s_cmp_lt_u32 s90, {LIMIT*8}")
    A("s_cbranch_scc1 L_sf")
    LBL("L_sf_ok")
    stamp(6)
    C("combine 4 waves: this wave handles head hh = sw; lane dq=l&31 -> d = dq + 32*i")
    A(f"s_lshl_b32 s88, s{sSW}, 2")
    A("v_and_b32 v5, 31, v0")
    A("v_lshlrev_b32 v3, 4, v5")
    A("v_add_u32 v3, s88, v3")
    A(f"s_lshl_b32 s88, s{sSW}, 3")
    A("v_mov_b32 v4, s88")
    for wv in range(4):
        A(f"ds_read2st64_b32 {vr(32+4*wv,2)}, v3 offset0:{64*wv} offset1:{64*wv+2}")
        A(f"ds_read2st64_b32 {vr(34+4*wv,2)}, v3 offset0:{64*wv+4} offset1:{64*wv+6}")
        A(f"ds_read_b64 {vr(64+2*wv,2)}, v4 offset:{L_K+16384*wv+2048}")
    A("s_waitcnt lgkmcnt(0)")
    for wv in range(4):
        A(f"v_mov_b32 v{50+wv}, v{64+2*wv}")
        A(f"v_mov_b32 v{54+wv}, v{65+2*wv}")
    A("v_max3_f32 v58, v50, v51, v52")
    A("v_max_f32 v58, v58, v53")
    A("s_mov_b32 s88, 0x3fb8aa3b")
    for wv in range(4):
        A(f"v_sub_f32 v{50+wv}, v{50+wv}, v58")
        A(f"v_mul_f32 v{50+wv}, s88, v{50+wv}")
        A(f"v_exp_f32 v{50+wv}, v{50+wv}")
    A("s_nop 0")
    for i in range(4):
        A(f"v_mul_f32 v{60+i}, v{32+i}, v50")
    A("v_mul_f32 v59, v54, v50")
    for wv in range(1, 4):
        for i in range(4):
            A(f"v_fmac_f32 v{60+i}, v{32+4*wv+i}, v{50+wv}")
        A(f"v_fmac_f32 v59, v{54+wv}, v{50+wv}")
    A("v_cmp_gt_u32 vcc, 32, v0")
    A("v_lshlrev_b32 v3, 4, v5")
    A("s_nop 0")
    A("v_cndmask_b32 v60, v58, v60, vcc")
    A("v_cndmask_b32 v61, v59, v61, vcc")
    A("v_cndmask_b32 v62, 0, v62, vcc")
    A("v_cndmask_b32 v63, 0, v63, vcc")
    A("v_mov_b32 v4, 0x200")
    A("v_cndmask_b32 v3, v4, v3, vcc")
    tag_pack(60)
    A("s_lshl_b32 s88, s2, 2")
    A(f"s_add_u32 s88, s88, s{sSW}")
    A(f"s_mul_i32 s88, s88, {AP_REC}")
    A(f"s_add_u32 s88, s88, {AP}")
    stamp(7)
    A("s_mov_b32 exec_hi, 1")
    A(f"buffer_store_dwordx4 v[60:63], v3, {srd(R_WS)}, s88 offen sc1")
    stamp(8)
    if PROF:
        stamp_store(1, 9)
    LBL("L_end")
    A("s_endpgm")
    nv = 256 if PROF else 224
    out.append('.section .rodata,"a"')
    out.append(".p2align 6")
    out.append(f".amdhsa_kernel {NAME}_kernel")
    out.append(f"  .amdhsa_next_free_vgpr {nv}")
    out.append("  .amdhsa_next_free_sgpr 96")
    out.append(f"  .amdhsa_accum_offset {nv}")
    out.append("  .amdhsa_group_segment_fixed_size 0")
    out.append("  .amdhsa_kernarg_size 96")
    out.append("  .amdhsa_user_sgpr_count 2")
    out.append("  .amdhsa_user_sgpr_kernarg_segment_ptr 1")
    out.append("  .amdhsa_system_sgpr_workgroup_id_x 1")
    out.append(".end_amdhsa_kernel")


gen()
txt = "\n".join(out) + "\n"
dst = sys.argv[1] if len(sys.argv) > 1 else "cdna_kernels/" + NAME + ".s"
open(dst, "w").write(txt)
print("wrote", dst, len(out), "lines", "STAMP", STAMP)
```

```python
import sys, os

NAME = "parallel_sum__sliding_block_cached__swiglu_ffn__decode"
PROF = int(os.environ.get("PROF", "0"))
NT = " nt" if int(os.environ.get("NT", "1")) else ""
DEPTH = int(os.environ.get("DEPTH", "8"))
SLEEP = int(os.environ.get("SLEEP", "1"))
HEAD = int(os.environ.get("HEAD", "0"))

QP = 0
GP = 262144
AP = GP + 8 * 2 * 2 * 1792 * 4
AP_REC = 528
OP = AP + 256 * 4 * AP_REC
OPA = OP
OPB = OP + 131072
WS_SIZE = OP + 256 * 1024
STAMP = WS_SIZE
WS_SIZE_ALL = (STAMP + 256 * 8 * 128) if PROF else WS_SIZE

L_K = 0
L_V = 65536
L_XN = 131072
L_SLOT = L_XN + 4096
L_Q = L_SLOT + 16384
L_O = L_Q + 1024
L_NONCE = L_O + 512
L_FLAGS = L_NONCE + 16
L_PX = L_NONCE + 64
L_END = L_PX + 512
L_WT = L_SLOT
QPOLL = int(os.environ.get("QPOLL", "2"))
FLATE = int(os.environ.get("FLATE", "24"))
DLO = int(os.environ.get("DLO", "16"))
NLO = int(os.environ.get("NLO", "0"))
NPRE = int(os.environ.get("NPRE", "8"))

LIMIT = 400000
out = []


def A(s):
    out.append("    " + s)


def LBL(s):
    out.append(s + ":")


def C(s):
    out.append("    ; " + s)


P_X, P_K, P_V, P_WQ, P_WO, P_BX, P_WG, P_WU = 16, 18, 20, 22, 24, 26, 28, 30
P_WD, P_OUT, P_DBG, P_WS = 32, 34, 36, 38
R_X, R_K, R_V, R_WQ, R_WO, R_WG, R_WU, R_WD, R_OUT, R_DBG, R_WS, R_T = (
    40, 44, 48, 52, 56, 60, 64, 68, 72, 76, 80, 84)
S_NB = 16
V_FF = 15


def srd(r):
    return f"s[{r}:{r+3}]"


def build_srd(dst, ptr, size):
    A(f"s_mov_b32 s{dst}, s{ptr}")
    A(f"s_and_b32 s{dst+1}, s{ptr+1}, 0xffff")
    A(f"s_mov_b32 s{dst+2}, {size}")
    A(f"s_mov_b32 s{dst+3}, 0x20000")


def vr(i, n):
    return f"v[{i}:{i+n-1}]"


DPP_STEPS = ["quad_perm:[1,0,3,2]", "quad_perm:[2,3,0,1]", "row_half_mirror", "row_mirror"]


def row_allreduce(regs, op):
    for st in DPP_STEPS:
        A("s_nop 1")
        for r in regs:
            A(f"v_{op}_f32_dpp v{r}, v{r}, v{r} {st} row_mask:0xf bank_mask:0xf")


def swap_allreduce(regs, tmps, op, which=("16", "32")):
    for wch in which:
        for r, t in zip(regs, tmps):
            A(f"v_mov_b32 v{t}, v{r}")
        A("s_nop 1")
        for r, t in zip(regs, tmps):
            A(f"v_permlane{wch}_swap_b32 v{r}, v{t}")
        A("s_nop 1")
        for r, t in zip(regs, tmps):
            A(f"v_{op}_f32 v{r}, v{r}, v{t}")


def wave_allreduce(regs, tmps, op):
    row_allreduce(regs, op)
    swap_allreduce(regs, tmps, op)


def round_bf16_pair(a, b, t):
    A(f"v_cvt_pk_bf16_f32 v{t}, v{a}, v{b}")
    A(f"v_lshlrev_b32 v{a}, 16, v{t}")
    A(f"v_and_b32 v{b}, 0xffff0000, v{t}")


def stamp(idx):
    if not PROF:
        return
    A("s_memrealtime s[94:95]")
    A("s_waitcnt lgkmcnt(0)")
    A(f"v_mov_b32 v{224+idx}, s94")


DBGST = int(os.environ.get("DBGST", "0"))


def stamp_store(role, n):
    if not PROF:
        return
    if DBGST:
        A(f"s_cmp_lg_u32 s2, {DBGST}")
        A(f"s_cbranch_scc1 L_end")
        A(f"s_mov_b32 s{R_DBG}, s{P_DBG}")
        A(f"s_and_b32 s{R_DBG+1}, s{P_DBG+1}, 0xffff")
        A(f"s_mov_b32 s{R_DBG+2}, 256")
        A(f"s_mov_b32 s{R_DBG+3}, 0x20000")
        A("s_mov_b64 exec, 1")
        A("v_mov_b32 v255, 0")
        idx = list(range(1, 11)) if role == 0 else [1, 2, 5, 6, 7]
        base = 1 if role == 0 else 11
        for j, i in enumerate(idx):
            A(f"v_sub_u32 v{224+i}, v{224+i}, v224")
            A(f"buffer_store_dword v{224+i}, v255, {srd(R_DBG)}, 0 offen offset:{4*(base+j)}")
        A("s_waitcnt vmcnt(0)")
        return
    A("s_mov_b64 exec, 1")
    A("s_lshl_b32 s94, s2, 10")
    A("s_lshl_b32 s95, s3, 7")
    A("s_add_u32 s94, s94, s95")
    A(f"s_add_u32 s94, s94, {STAMP}")
    A("v_mov_b32 v255, 0")
    for i in range(n):
        A(f"buffer_store_dword v{224+i}, v255, {srd(R_WS)}, s94 offen offset:{4*i}")
    A("s_waitcnt vmcnt(0)")


def tag_pack(base):
    for i in range(4):
        A(f"v_add_u32 v{base+i}, 0x80, v{base+i}")
        A(f"v_bfi_b32 v{base+i}, v{V_FF}, s{S_NB+i}, v{base+i}")


def tag_check(bases, bad, t0, t1):
    first = True
    for b in bases:
        for i in range(0, 4, 2):
            A(f"v_xor_b32 v{t0}, s{S_NB+i}, v{b+i}")
            A(f"v_xor_b32 v{t1}, s{S_NB+i+1}, v{b+i+1}")
            if first:
                A(f"v_or_b32 v{bad}, v{t0}, v{t1}")
                first = False
            else:
                A(f"v_or3_b32 v{bad}, v{bad}, v{t0}, v{t1}")
    A(f"v_and_b32 v{bad}, 0xff, v{bad}")


def tag_strip(bases):
    for b in bases:
        for i in range(4):
            A(f"v_and_b32 v{b+i}, 0xffffff00, v{b+i}")


def retry_tail(label, bad, scnt):
    A(f"v_cmp_ne_u32 vcc, 0, v{bad}")
    A("s_nop 4")
    A(f"s_cbranch_vccz {label}_ok")
    A(f"s_sleep {SLEEP}")
    A(f"s_add_u32 s{scnt}, s{scnt}, 1")
    A(f"s_cmp_lt_u32 s{scnt}, {LIMIT}")
    A(f"s_cbranch_scc1 {label}")
    LBL(label + "_ok")


def gen():
    hdr = open("cdna_kernels/" + NAME + ".s.ref").read().split("\n")
    for ln in hdr:
        if ln.startswith("; @launch"):
            break
        out.append(ln)
    out.append(f"; @launch grid=(256,1,1) block=(512,1,1) lds={L_END}")
    out.append('.amdgcn_target "amdgcn-amd-amdhsa--gfx950"')
    out.append(".text")
    out.append(f".globl {NAME}_kernel")
    out.append(".p2align 8")
    out.append(f".type {NAME}_kernel,@function")
    LBL(f"{NAME}_kernel")

    A("s_cmp_ge_u32 s2, 256")
    A("s_cbranch_scc1 L_end")
    A("s_load_dwordx16 s[16:31], s[0:1], 0")
    A("s_load_dwordx8 s[32:39], s[0:1], 64")
    A("s_memrealtime s[92:93]")
    A("v_lshrrev_b32 v1, 6, v0")
    A("v_and_b32 v0, 63, v0")
    A(f"v_mov_b32 v{V_FF}, 0xff")
    A("v_readfirstlane_b32 s3, v1")
    A("s_waitcnt lgkmcnt(0)")
    build_srd(R_K, P_K, 134217728)
    build_srd(R_V, P_V, 134217728)
    build_srd(R_WS, P_WS, WS_SIZE_ALL)
    C("clear the nonce mailbox, then an immediate barrier")
    A("v_mov_b32 v16, 0")
    A(f"v_mov_b32 v17, {L_NONCE}")
    A("ds_write_b32 v17, v16")
    A("s_waitcnt lgkmcnt(0)")
    A("s_barrier")
    A("s_cmp_ge_u32 s3, 4")
    A("s_cbranch_scc1 L_stream")
    build_srd(R_X, P_X, 2048)
    build_srd(R_WQ, P_WQ, 4194304)
    build_srd(R_WO, P_WO, 4194304)
    build_srd(R_WG, P_WG, 1835008)
    build_srd(R_WU, P_WU, 1835008)
    build_srd(R_WD, P_WD, 1835008)
    build_srd(R_OUT, P_OUT, 2048)
    build_srd(R_DBG, P_DBG, 256)

    def read_nonce(lbl):
        A(f"v_mov_b32 v17, {L_NONCE}")
        A("s_mov_b32 s93, 0")
        LBL(lbl)
        A("ds_read_b32 v16, v17")
        A("s_waitcnt lgkmcnt(0)")
        A("v_readfirstlane_b32 s92, v16")
        A("s_add_u32 s93, s93, 1")
        A("s_cmp_lg_u32 s92, 0")
        A(f"s_cbranch_scc1 {lbl}_ok")
        A(f"s_cmp_lt_u32 s93, {LIMIT*8}")
        A(f"s_cbranch_scc1 {lbl}")
        LBL(lbl + "_ok")
        for i in range(4):
            A(f"s_bfe_u32 s{S_NB+i}, s92, {(8 << 16) | (8*i)}")

    LBL("L_aux")
    stamp(0)
    sSTR, sROW0, sCOL, sSO, sSTEP, sXB = 4, 5, 6, 7, 8, 9
    sSL0, sBSTR, sDST = 11, 12, 13
    sCNT = 14
    sT0, sT1 = 88, 89
    C("x loads")
    A("v_lshlrev_b32 v1, 4, v0")
    A(f"buffer_load_dwordx4 v[2:5], v1, {srd(R_X)}, 0 offen")
    A(f"buffer_load_dwordx4 v[6:9], v1, {srd(R_X)}, 0 offen offset:1024")
    C("wave 3 acquires the launch nonce")
    A("s_cmp_lg_u32 s3, 3")
    A("s_cbranch_scc1 L_aux_nn")
    A("v_mov_b32 v14, 0")
    A(f"s_mov_b32 s{sCNT}, 0")
    A("s_cmp_ge_u32 s2, 8")
    A("s_cbranch_scc1 L_nonce")
    A("s_or_b32 s92, s92, 1")
    A("v_mov_b32 v16, s92")
    A("v_mov_b32 v17, 0")
    A("s_mov_b64 exec, 1")
    A(f"buffer_atomic_cmpswap v[16:17], v14, {srd(R_DBG)}, 0 offen sc0 sc1")
    A("s_mov_b64 exec, -1")
    A("s_waitcnt vmcnt(0)")
    A("v_readfirstlane_b32 s93, v16")
    A("s_nop 3")
    A("s_cmp_eq_u32 s93, 0")
    A("s_cselect_b32 s92, s92, s93")
    A("s_branch L_nonce_ok")
    LBL("L_nonce")
    A(f"buffer_load_dword v16, v14, {srd(R_DBG)}, 0 offen sc1")
    A("s_waitcnt vmcnt(0)")
    A("v_readfirstlane_b32 s92, v16")
    A("s_nop 3")
    A("s_cmp_lg_u32 s92, 0")
    A("s_cbranch_scc1 L_nonce_ok")
    A(f"s_add_u32 s{sCNT}, s{sCNT}, 1")
    A(f"s_cmp_lt_u32 s{sCNT}, {LIMIT}")
    A("s_cbranch_scc1 L_nonce")
    LBL("L_nonce_ok")
    A("v_mov_b32 v16, s92")
    A(f"v_mov_b32 v17, {L_NONCE}")
    A("ds_write_b32 v17, v16")
    LBL("L_aux_nn")
    C("tile parameters by wave")
    A(f"s_lshl_b32 s{sSL0}, s3, 12")
    A(f"s_add_u32 s{sSL0}, s{sSL0}, {L_SLOT}")
    A("s_cmp_ge_u32 s3, 2")
    A("s_cbranch_scc1 L_aux_gu")
    A(f"s_mov_b32 s{R_T}, s{R_WQ}")
    A(f"s_mov_b32 s{R_T+1}, s{R_WQ+1}")
    A(f"s_mov_b32 s{R_T+2}, 4194304")
    A(f"s_mov_b32 s{R_T+3}, 0x20000")
    A(f"s_mov_b32 s{sSTR}, 8192")
    A(f"s_and_b32 s{sT0}, s2, 3")
    A(f"s_lshl_b32 s{sT0}, s{sT0}, 1")
    A(f"s_add_u32 s{sT0}, s{sT0}, s3")
    A(f"s_lshl_b32 s{sROW0}, s{sT0}, 6")
    A(f"s_lshr_b32 s{sT1}, s2, 2")
    A(f"s_lshl_b32 s{sCOL}, s{sT1}, 7")
    A(f"s_mov_b32 s{sBSTR}, 32768")
    A(f"s_and_b32 s{sDST}, s2, 3")
    A(f"s_lshl_b32 s{sDST}, s{sDST}, 16")
    A(f"s_lshl_b32 s{sT1}, s{sT1}, 9")
    A(f"s_add_u32 s{sDST}, s{sDST}, s{sT1}")
    A(f"s_add_u32 s{sDST}, s{sDST}, {QP}")
    A("s_branch L_aux_tile")
    LBL("L_aux_gu")
    A("s_cmp_eq_u32 s3, 2")
    A(f"s_cselect_b32 s{R_T}, s{R_WG}, s{R_WU}")
    A(f"s_cselect_b32 s{R_T+1}, s{R_WG+1}, s{R_WU+1}")
    A(f"s_mov_b32 s{R_T+2}, 1835008")
    A(f"s_mov_b32 s{R_T+3}, 0x20000")
    A(f"s_mov_b32 s{sSTR}, 3584")
    A(f"s_and_b32 s{sT0}, s2, 7")
    A(f"s_lshl_b32 s{sROW0}, s{sT0}, 6")
    A(f"s_lshr_b32 s{sT1}, s2, 3")
    A(f"s_lshl_b32 s{sCOL}, s{sT1}, 7")
    A(f"s_mov_b32 s{sBSTR}, 14336")
    A(f"s_mul_i32 s{sDST}, s{sT0}, 28672")
    A(f"s_lshl_b32 s{sT1}, s{sT1}, 8")
    A(f"s_add_u32 s{sDST}, s{sDST}, s{sT1}")
    A(f"s_sub_u32 s{sT1}, s3, 2")
    A(f"s_mul_i32 s{sT1}, s{sT1}, 7168")
    A(f"s_add_u32 s{sDST}, s{sDST}, s{sT1}")
    A(f"s_add_u32 s{sDST}, s{sDST}, {GP}")
    LBL("L_aux_tile")
    VW = 64
    A("v_lshrrev_b32 v10, 3, v0")
    A("v_and_b32 v11, 7, v0")
    A(f"v_mul_lo_u32 v12, v10, s{sSTR}")
    A("v_lshl_add_u32 v12, v11, 4, v12")
    A(f"s_mul_i32 s{sSO}, s{sROW0}, s{sSTR}")
    A(f"s_add_u32 s{sSO}, s{sSO}, s{sCOL}")
    A(f"s_lshl_b32 s{sSTEP}, s{sSTR}, 3")

    def tile_loads():
        for t in range(8):
            A(f"buffer_load_dwordx4 {vr(VW+4*t,4)}, v12, {srd(R_T)}, s{sSO} offen{NT}")
            if t < 7:
                A(f"s_add_u32 s{sSO}, s{sSO}, s{sSTEP}")
    A("s_cmp_ge_u32 s3, 2")
    A("s_cbranch_scc1 L_aux_late")
    tile_loads()
    A("s_waitcnt vmcnt(8)")
    A("s_branch L_aux_ln")
    LBL("L_aux_late")
    A("s_waitcnt vmcnt(0)")
    LBL("L_aux_ln")
    C("layernorm")
    X0, X1 = 20, 28
    for i in range(4):
        A(f"v_lshlrev_b32 v{X0+2*i}, 16, v{2+i}")
        A(f"v_and_b32 v{X0+2*i+1}, 0xffff0000, v{2+i}")
        A(f"v_lshlrev_b32 v{X1+2*i}, 16, v{6+i}")
        A(f"v_and_b32 v{X1+2*i+1}, 0xffff0000, v{6+i}")
    for (X, s) in ((X0, 36), (X1, 37)):
        A(f"v_add_f32 v{s}, v{X}, v{X+1}")
        for i in range(2, 8):
            A(f"v_add_f32 v{s}, v{s}, v{X+i}")
    wave_allreduce([36, 37], [38, 39], "add")
    A("s_mov_b32 s88, 0x3b000000")
    A("v_mul_f32 v36, s88, v36")
    A("v_mul_f32 v37, s88, v37")
    for (X, m, s) in ((X0, 36, 40), (X1, 37, 41)):
        A(f"v_sub_f32 v42, v{X}, v{m}")
        A(f"v_mul_f32 v{s}, v42, v42")
        for i in range(1, 8):
            A(f"v_sub_f32 v42, v{X+i}, v{m}")
            A(f"v_fmac_f32 v{s}, v42, v42")
    wave_allreduce([40, 41], [38, 39], "add")
    A("v_mul_f32 v40, s88, v40")
    A("v_mul_f32 v41, s88, v41")
    round_bf16_pair(36, 37, 42)
    round_bf16_pair(40, 41, 42)
    A("s_mov_b32 s88, 0x3727c5ac")
    A("v_add_f32 v40, s88, v40")
    A("v_add_f32 v41, s88, v41")
    round_bf16_pair(40, 41, 42)
    A("v_sqrt_f32 v40, v40")
    A("v_sqrt_f32 v41, v41")
    A("s_nop 0")
    round_bf16_pair(40, 41, 42)
    A("v_rcp_f32 v44, v40")
    A("v_rcp_f32 v45, v41")
    XN = 48
    for i in range(8):
        A(f"v_sub_f32 v{X0+i}, v{X0+i}, v36")
        A(f"v_sub_f32 v{X1+i}, v{X1+i}, v37")
        round_bf16_pair(X0 + i, X1 + i, 42)
        for (X, sd, rc, dst) in ((X0, 40, 44, XN + 2 * i), (X1, 41, 45, XN + 2 * i + 1)):
            A(f"v_mul_f32 v{dst}, v{X+i}, v{rc}")
            A(f"v_fma_f32 v43, -v{dst}, v{sd}, v{X+i}")
            A(f"v_fmac_f32 v{dst}, v43, v{rc}")
        round_bf16_pair(XN + 2 * i, XN + 2 * i + 1, 42)
    A("v_lshlrev_b32 v1, 6, v0")
    A(f"v_add_u32 v1, {L_XN}, v1")
    for j in range(4):
        A(f"ds_write_b128 v1, {vr(XN+4*j,4)} offset:{16*j}")
    A("s_cmp_ge_u32 s3, 2")
    A("s_cbranch_scc0 L_aux_early")
    if FLATE:
        read_nonce("L_rn_ffn")
        A(f"v_mov_b32 v17, {L_FLAGS + 20}")
        A("s_mov_b32 s90, 0")
        LBL("L_iw")
        A("ds_read_b32 v16, v17")
        A("s_waitcnt lgkmcnt(0)")
        A("v_readfirstlane_b32 s88, v16")
        A("s_add_u32 s90, s90, 1")
        A("s_cmp_eq_u32 s88, s92")
        A("s_cbranch_scc1 L_iw_ok")
        A("s_sleep 4")
        A(f"s_cmp_lt_u32 s90, {LIMIT*8}")
        A("s_cbranch_scc1 L_iw")
        LBL("L_iw_ok")
    tile_loads()
    LBL("L_aux_early")
    A("s_waitcnt lgkmcnt(0)")
    A(f"s_lshl_b32 s{sXB}, s{sROW0}, 3")
    A(f"s_add_u32 s{sXB}, s{sXB}, {L_XN}")
    A("v_lshlrev_b32 v13, 3, v10")
    A(f"v_add_u32 v13, s{sXB}, v13")
    XP = 20
    for t in range(8):
        A(f"ds_read_b64 {vr(XP+2*t,2)}, v13 offset:{64*t}")
    A("s_waitcnt lgkmcnt(0)")
    AC0, AC1 = 36, 44
    for t in range(8):
        A(f"s_waitcnt vmcnt({7-t})")
        for i in range(4):
            w = VW + 4 * t + i
            A(f"v_lshlrev_b32 v52, 16, v{w}")
            A(f"v_and_b32 v53, 0xffff0000, v{w}")
            op = "v_mul_f32" if t == 0 else "v_fmac_f32"
            A(f"{op} v{AC0+2*i}, v52, v{XP+2*t}")
            A(f"{op} v{AC0+2*i+1}, v53, v{XP+2*t}")
            A(f"{op} v{AC1+2*i}, v52, v{XP+2*t+1}")
            A(f"{op} v{AC1+2*i+1}, v53, v{XP+2*t+1}")
    stamp(1)
    C("in-wave slot reduce (own 4 KiB slot area, no barrier)")
    A("v_lshlrev_b32 v1, 9, v10")
    A("v_lshl_add_u32 v1, v11, 5, v1")
    A(f"v_add_u32 v1, s{sSL0}, v1")
    A(f"ds_write_b128 v1, {vr(AC0,4)}")
    A(f"ds_write_b128 v1, {vr(AC0+4,4)} offset:16")
    A(f"ds_write_b128 v1, {vr(AC1,4)} offset:256")
    A(f"ds_write_b128 v1, {vr(AC1+4,4)} offset:272")
    A("s_waitcnt lgkmcnt(0)")
    A("v_and_b32 v2, 31, v0")
    A("v_lshrrev_b32 v3, 5, v0")
    A("v_lshlrev_b32 v1, 4, v2")
    A("v_lshl_add_u32 v1, v3, 11, v1")
    A(f"v_add_u32 v1, s{sSL0}, v1")
    for s in range(4):
        A(f"ds_read_b128 {vr(64+4*s,4)}, v1 offset:{512*s}")
    A("s_waitcnt lgkmcnt(0)")
    for i in range(4):
        A(f"v_add_f32 v{64+i}, v{64+i}, v{68+i}")
        A(f"v_add_f32 v{72+i}, v{72+i}, v{76+i}")
        A(f"v_add_f32 v{64+i}, v{64+i}, v{72+i}")
    swap_allreduce([64, 65, 66, 67], [68, 69, 70, 71], "add", which=("32",))
    read_nonce("L_rn_aux")
    C("store tagged partials")
    A("v_lshrrev_b32 v3, 4, v2")
    A(f"v_mul_lo_u32 v3, v3, s{sBSTR}")
    A("v_and_b32 v4, 15, v2")
    A("s_cmp_ge_u32 s3, 2")
    A("s_cbranch_scc1 L_aux_st_gu")
    A("v_lshlrev_b32 v5, 4, v2")
    A(f"v_add_u32 v5, {L_PX}, v5")
    A(f"v_mov_b32 v6, {L_FLAGS + 16}")
    A("v_mov_b32 v7, s92")
    A("s_cmp_eq_u32 s3, 0")
    A("s_cbranch_scc1 L_aux_st_q0")
    C("wave 1: hand the partial to wave 0 through LDS")
    A("ds_write_b128 v5, v[64:67]")
    A("s_waitcnt lgkmcnt(0)")
    A("ds_write_b32 v6, v7")
    A("s_branch L_aux_st_skip")
    LBL("L_aux_st_q0")
    A("s_mov_b32 s90, 0")
    LBL("L_px")
    A("ds_read_b32 v8, v6")
    A("s_waitcnt lgkmcnt(0)")
    A("v_readfirstlane_b32 s88, v8")
    A("s_add_u32 s90, s90, 1")
    A("s_cmp_eq_u32 s88, s92")
    A("s_cbranch_scc1 L_px_ok")
    A(f"s_cmp_lt_u32 s90, {LIMIT*8}")
    A("s_cbranch_scc1 L_px")
    LBL("L_px_ok")
    A("ds_read_b128 v[68:71], v5")
    A("s_waitcnt lgkmcnt(0)")
    A("v_add_f32 v64, v64, v68")
    A("v_add_f32 v65, v65, v69")
    A("v_add_f32 v68, v66, v70")
    A("v_add_f32 v69, v67, v71")
    A("v_mov_b32 v66, s92")
    A("v_mov_b32 v67, s92")
    A("v_mov_b32 v70, s92")
    A("v_mov_b32 v71, s92")
    A("v_lshl_add_u32 v3, v4, 5, v3")
    A("s_mov_b32 exec_hi, 0")
    A(f"buffer_store_dwordx4 v[64:67], v3, {srd(R_WS)}, s{sDST} offen sc1")
    A(f"buffer_store_dwordx4 v[68:71], v3, {srd(R_WS)}, s{sDST} offen offset:16 sc1")
    A("s_mov_b64 exec, -1")
    A("s_branch L_aux_st_skip")
    LBL("L_aux_st_gu")
    tag_pack(64)
    A("v_lshl_add_u32 v3, v4, 4, v3")
    A("s_cmp_ge_u32 s2, 224")
    A("s_cbranch_scc1 L_aux_st_skip")
    A("s_mov_b32 exec_hi, 0")
    A(f"buffer_store_dwordx4 v[64:67], v3, {srd(R_WS)}, s{sDST} offen sc1")
    A("s_mov_b64 exec, -1")
    LBL("L_aux_st_skip")
    stamp(2)
    sHKV, sB, sH = 4, 5, 6
    A(f"s_lshr_b32 s{sHKV}, s2, 5")
    A(f"s_bfe_u32 s{sB}, s2, 0x10004")
    A(f"s_and_b32 s{sH}, s2, 31")
    A(f"s_mov_b32 s{sCNT}, 0")
    A("v_lshlrev_b32 v12, 10, v10")
    A("v_lshl_add_u32 v12, v11, 4, v12")
    A(f"s_lshl_b32 s89, s{sHKV}, 7")
    A("s_cmp_ge_u32 s3, 2")
    A("s_cbranch_scc1 L_aux_ffn")
    VWO = 128
    C("q gather (waves 0,1): sentinel poll, then full gather")
    A("v_bfe_u32 v1, v0, 2, 2")
    A("v_lshlrev_b32 v1, 16, v1")
    A("v_and_b32 v2, 3, v0")
    A("v_lshl_add_u32 v1, v2, 9, v1")
    A(f"s_lshl_b32 s88, s{sB}, 15")
    A(f"s_lshl_b32 s89, s{sHKV}, 12")
    A("s_add_u32 s88, s88, s89")
    A("s_lshl_b32 s89, s3, 11")
    A("s_add_u32 s88, s88, s89")
    A(f"s_add_u32 s90, s88, {QP}")
    if QPOLL == 2:
        LBL("L_qs")
        A(f"buffer_load_dwordx4 v[4:7], v1, {srd(R_WS)}, s90 offen offset:496 sc1")
        A("s_waitcnt vmcnt(0)")
        A("v_xor_b32 v4, s92, v6")
        A("v_xor_b32 v5, s92, v7")
        A("v_or_b32 v4, v4, v5")
        retry_tail("L_qs", 4, sCNT)
    A("v_lshlrev_b32 v2, 5, v0")
    LBL("L_qg")
    A("s_mov_b32 s88, s90")
    for ks in range(4):
        A(f"buffer_load_dwordx4 {vr(64+8*ks,4)}, v2, {srd(R_WS)}, s88 offen sc1")
        A(f"buffer_load_dwordx4 {vr(68+8*ks,4)}, v2, {srd(R_WS)}, s88 offen offset:16 sc1")
        if ks < 3:
            A("s_add_u32 s88, s88, 65536")
    A("s_waitcnt vmcnt(0)")
    for k in range(8):
        b = 64 + 4 * k
        A(f"v_xor_b32 v5, s92, v{b+2}")
        A(f"v_xor_b32 v6, s92, v{b+3}")
        if k == 0:
            A("v_or_b32 v4, v5, v6")
        else:
            A("v_or3_b32 v4, v4, v5, v6")
    retry_tail("L_qg", 4, sCNT)
    for (d, o) in ((64, 0), (65, 1), (68, 4), (69, 5)):
        A(f"v_add_f32 v{d}, v{64+o}, v{72+o}")
        A(f"v_add_f32 v{80+o}, v{80+o}, v{88+o}")
        A(f"v_add_f32 v{d}, v{d}, v{80+o}")
    A("v_cvt_pk_bf16_f32 v4, v64, v65")
    A("v_cvt_pk_bf16_f32 v5, v68, v69")
    A("s_lshl_b32 s88, s3, 9")
    A(f"s_add_u32 s88, s88, {L_Q}")
    A("v_lshlrev_b32 v3, 3, v0")
    A("v_add_u32 v3, s88, v3")
    A("ds_write_b64 v3, v[4:5]")
    A("s_lshl_b32 s88, s3, 2")
    A(f"s_add_u32 s88, s88, {L_FLAGS + 24}")
    A("v_mov_b32 v6, s88")
    A("v_mov_b32 v7, s92")
    A("s_waitcnt lgkmcnt(0)")
    A("ds_write_b32 v6, v7")
    stamp(3)
    A("s_cmp_lg_u32 s3, 0")
    A("s_cbranch_scc1 L_end")
    C("wave 0: wo tile loads (128 rows x 64 cols)")
    A(f"s_lshl_b32 s89, s{sHKV}, 7")
    A(f"s_lshl_b32 s88, s{sH}, 17")
    A("s_add_u32 s88, s88, s89")
    for t in range(16):
        A(f"buffer_load_dwordx4 {vr(VWO+4*t,4)}, v12, {srd(R_WO)}, s88 offen{NT}")
        if t < 15:
            A("s_add_u32 s88, s88, 8192")
    A("s_waitcnt vmcnt(0)")
    stamp(4)
    C("wave 0: stage wo through LDS -> MFMA B fragments")
    BF = 64
    A("s_movk_i32 s88, 144")
    A("v_mul_lo_u32 v1, v10, s88")
    A("v_lshl_add_u32 v1, v11, 4, v1")
    A(f"v_add_u32 v1, {L_WT}, v1")
    A("v_lshrrev_b32 v2, 4, v0")
    A("v_bfe_u32 v3, v0, 2, 2")
    A("v_lshl_add_u32 v2, v2, 3, v3")
    A("v_and_b32 v3, 3, v0")
    A("v_mul_lo_u32 v2, v2, s88")
    A("v_lshl_add_u32 v2, v3, 3, v2")
    A(f"v_add_u32 v2, {L_WT}, v2")
    for p in range(4):
        hb = 0
        if p:
            A("s_waitcnt lgkmcnt(0)")
        for t in range(4):
            A(f"ds_write_b128 v1, {vr(VWO+4*(4*p+t),4)} offset:{hb + 1152*t}")
        A("s_waitcnt lgkmcnt(0)")
        for nt in range(4):
            base = BF + 16 * p + 4 * nt
            A(f"ds_read_b64_tr_b16 {vr(base,2)}, v2 offset:{hb + 32*nt}")
            A(f"ds_read_b64_tr_b16 {vr(base+2,2)}, v2 offset:{hb + 576 + 32*nt}")
    A("s_waitcnt lgkmcnt(0)")
    stamp(5)
    C("attention partial gather, both batches")
    sHK2 = 7
    A(f"s_lshr_b32 s{sHK2}, s{sH}, 2")
    A(f"s_mov_b32 s{sCNT}, 0")
    A(f"s_lshl_b32 s88, s{sHK2}, 7")
    A(f"s_and_b32 s89, s{sH}, 3")
    A("s_add_u32 s88, s88, s89")
    A(f"s_mul_i32 s88, s88, {AP_REC}")
    A(f"s_add_u32 s90, s88, {AP}")
    A("v_and_b32 v1, 15, v0")
    A(f"s_mov_b32 s89, {4*AP_REC}")
    A("v_mul_lo_u32 v2, v1, s89")
    A("v_lshrrev_b32 v6, 5, v0")
    A("v_and_b32 v7, 31, v0")
    A(f"s_mov_b32 s89, {8*4*AP_REC}")
    A("v_mul_lo_u32 v8, v6, s89")
    A("v_lshl_add_u32 v8, v7, 4, v8")
    G = 128
    LBL("L_as")
    A(f"s_add_u32 s88, s90, {16*4*AP_REC}")
    A(f"buffer_load_dwordx4 {vr(G,4)}, v2, {srd(R_WS)}, s90 offen offset:512 sc1")
    A(f"buffer_load_dwordx4 {vr(G+36,4)}, v2, {srd(R_WS)}, s88 offen offset:512 sc1")
    A("s_waitcnt vmcnt(0)")
    tag_check([G, G + 36], 4, 5, 9)
    retry_tail("L_as", 4, sCNT)
    LBL("L_ag")
    A("s_mov_b32 s88, s90")
    for b in range(2):
        A(f"buffer_load_dwordx4 {vr(G+36*b,4)}, v2, {srd(R_WS)}, s88 offen offset:512 sc1")
        for t in range(8):
            A(f"buffer_load_dwordx4 {vr(G+36*b+4+4*t,4)}, v8, {srd(R_WS)}, s88 offen sc1")
            A(f"s_add_u32 s88, s88, {4*AP_REC}")
        if b == 0:
            A(f"s_add_u32 s88, s88, {8*4*AP_REC}")
    A("s_waitcnt vmcnt(0)")
    tag_check([G + 4 * k for k in range(18)], 4, 5, 9)
    retry_tail("L_ag", 4, sCNT)
    tag_strip([G + 4 * k for k in range(18)])
    stamp(6)
    A(f"v_mov_b32 v20, v{G}")
    A(f"v_mov_b32 v21, v{G+36}")
    row_allreduce([20, 21], "max")
    A("s_mov_b32 s88, 0x3fb8aa3b")
    for b in range(2):
        A(f"v_sub_f32 v{22+b}, v{G+36*b}, v{20+b}")
        A(f"v_mul_f32 v{22+b}, s88, v{22+b}")
        A(f"v_exp_f32 v{22+b}, v{22+b}")
    A("s_nop 0")
    for b in range(2):
        A(f"v_mul_f32 v{24+b}, v{G+36*b+1}, v{22+b}")
    row_allreduce([24, 25], "add")
    A("v_lshlrev_b32 v9, 5, v6")
    for t in range(8):
        A(f"v_add_u32 v{26+t}, {4*t}, v9")
    for b in range(2):
        for t in range(8):
            A(f"ds_bpermute_b32 v{34+8*b+t}, v{26+t}, v{22+b}")
    A("s_waitcnt lgkmcnt(0)")
    for b in range(2):
        for i in range(4):
            A(f"v_mul_f32 v{50+4*b+i}, v{G+36*b+4+i}, v{34+8*b}")
        for t in range(1, 8):
            for i in range(4):
                A(f"v_fmac_f32 v{50+4*b+i}, v{G+36*b+4+4*t+i}, v{34+8*b+t}")
    swap_allreduce(list(range(50, 58)), list(range(26, 34)), "add", which=("32",))
    A("v_rcp_f32 v20, v24")
    A("v_rcp_f32 v21, v25")
    A("s_nop 0")
    for b in range(2):
        for i in range(4):
            r = 50 + 4 * b + i
            A(f"v_mul_f32 v26, v{r}, v{20+b}")
            A(f"v_fma_f32 v27, -v26, v{24+b}, v{r}")
            A(f"v_fma_f32 v{r}, v27, v{20+b}, v26")
    for b in range(2):
        A(f"v_cvt_pk_bf16_f32 v{28+2*b}, v{50+4*b}, v{51+4*b}")
        A(f"v_cvt_pk_bf16_f32 v{29+2*b}, v{52+4*b}, v{53+4*b}")
    A("v_lshlrev_b32 v3, 1, v7")
    A(f"v_add_u32 v3, {L_O}, v3")
    for b in range(2):
        A(f"ds_write_b16 v3, v{28+2*b} offset:{256*b}")
        A(f"ds_write_b16_d16_hi v3, v{28+2*b} offset:{256*b+64}")
        A(f"ds_write_b16 v3, v{29+2*b} offset:{256*b+128}")
        A(f"ds_write_b16_d16_hi v3, v{29+2*b} offset:{256*b+192}")
    A("v_and_b32 v3, 1, v0")
    A("v_lshlrev_b32 v3, 8, v3")
    A("v_lshrrev_b32 v4, 4, v0")
    A("v_lshl_add_u32 v3, v4, 4, v3")
    A(f"v_add_u32 v3, {L_O}, v3")
    A("s_waitcnt lgkmcnt(0)")
    AF = 32
    for s in range(4):
        A(f"ds_read_b128 {vr(AF+4*s,4)}, v3 offset:{64*s}")
    A("s_waitcnt lgkmcnt(0)")
    AC = 48
    for s in range(4):
        for nt in range(4):
            src = "0" if s == 0 else vr(AC + 4 * nt, 4)
            A(f"v_mfma_f32_16x16x32_bf16 {vr(AC+4*nt,4)}, {vr(AF+4*s,4)}, {vr(BF+16*s+4*nt,4)}, {src}")
    A("s_nop 7")
    A("s_nop 1")
    stamp(7)
    for b in range(2):
        for nt in range(4):
            A(f"v_mov_b32 v{4+4*b+nt}, v{AC+4*nt+b}")
    tag_pack(4)
    tag_pack(8)
    A("v_lshlrev_b32 v1, 4, v0")
    A("s_lshl_b32 s88, s2, 9")
    A(f"s_add_u32 s88, s88, {OPA}")
    A("s_mov_b64 exec, 0xffff")
    A(f"buffer_store_dwordx4 v[4:7], v1, {srd(R_WS)}, s88 offen sc1")
    A(f"buffer_store_dwordx4 v[8:11], v1, {srd(R_WS)}, s88 offen offset:256 sc1")
    A("s_mov_b64 exec, -1")
    stamp(8)
    C("phase 4: outputs b=(w>>4)&1, cols cs*64 + (w&15) + 16*nt")
    A("s_and_b32 s88, s2, 15")
    A("s_lshl_b32 s88, s88, 1")
    A(f"s_lshl_b32 s89, s{sHKV}, 7")
    A("s_add_u32 s88, s88, s89")
    A(f"s_lshl_b32 s89, s{sB}, 10")
    A("s_add_u32 s91, s88, s89")
    A("v_mov_b32 v20, s91")
    for nt in range(4):
        A(f"buffer_load_ushort v{22+nt}, v20, {srd(R_X)}, 0 offen offset:{32*nt}")
    A("v_and_b32 v1, 31, v0")
    A("v_lshlrev_b32 v1, 9, v1")
    A("v_lshrrev_b32 v2, 5, v0")
    A("v_lshl_add_u32 v1, v2, 17, v1")
    A(f"s_lshl_b32 s88, s{sHKV}, 14")
    A(f"s_lshl_b32 s89, s{sB}, 8")
    A("s_add_u32 s88, s88, s89")
    A("s_and_b32 s89, s2, 15")
    A("s_lshl_b32 s89, s89, 4")
    A("s_add_u32 s88, s88, s89")
    A(f"s_add_u32 s88, s88, {OPA}")
    A(f"s_mov_b32 s{sCNT}, 0")
    LBL("L_og")
    A(f"buffer_load_dwordx4 v[4:7], v1, {srd(R_WS)}, s88 offen sc1")
    A("s_waitcnt vmcnt(0)")
    tag_check([4], 8, 9, 10)
    retry_tail("L_og", 8, sCNT)
    tag_strip([4])
    stamp(9)
    row_allreduce([4, 5, 6, 7], "add")
    swap_allreduce([4, 5, 6, 7], [8, 9, 10, 11], "add", which=("16",))
    round_bf16_pair(4, 5, 12)
    round_bf16_pair(6, 7, 12)
    for i in range(4):
        A(f"v_mov_b32 v{8+i}, v{4+i}")
    A("s_nop 1")
    for i in range(4):
        A(f"v_permlane32_swap_b32 v{4+i}, v{8+i}")
    A("s_nop 1")
    for i in range(4):
        A(f"v_lshlrev_b32 v{22+i}, 16, v{22+i}")
        A(f"v_add_f32 v{4+i}, v{22+i}, v{4+i}")
    round_bf16_pair(4, 5, 12)
    round_bf16_pair(6, 7, 12)
    for i in range(4):
        A(f"v_add_f32 v{4+i}, v{4+i}, v{8+i}")
    A("v_cvt_pk_bf16_f32 v12, v4, v5")
    A("v_cvt_pk_bf16_f32 v13, v6, v7")
    A("s_mov_b64 exec, 1")
    A(f"buffer_store_short v12, v20, {srd(R_OUT)}, 0 offen")
    A(f"buffer_store_short_d16_hi v12, v20, {srd(R_OUT)}, 0 offen offset:32")
    A(f"buffer_store_short v13, v20, {srd(R_OUT)}, 0 offen offset:64")
    A(f"buffer_store_short_d16_hi v13, v20, {srd(R_OUT)}, 0 offen offset:96")
    stamp(10)
    stamp_store(0, 11)
    A("s_branch L_end")

    LBL("L_aux_ffn")
    VWD = 128
    A(f"s_mul_i32 s88, s{sH}, 57344")
    A("s_add_u32 s88, s88, s89")
    for t in range(7):
        A(f"buffer_load_dwordx4 {vr(VWD+4*t,4)}, v12, {srd(R_WD)}, s88 offen{NT}")
        if t < 6:
            A("s_add_u32 s88, s88, 8192")
    A(f"v_mov_b32 v5, {L_FLAGS + 24}")
    A("s_mov_b32 s90, 0")
    LBL("L_fw")
    A("ds_read_b32 v6, v5")
    A("s_waitcnt lgkmcnt(0)")
    A("v_readfirstlane_b32 s88, v6")
    A("s_add_u32 s90, s90, 1")
    A("s_cmp_eq_u32 s88, s92")
    A("s_cbranch_scc1 L_fw_ok")
    A("s_sleep 4")
    A(f"s_cmp_lt_u32 s90, {LIMIT*8}")
    A("s_cbranch_scc1 L_fw")
    LBL("L_fw_ok")
    A("s_mov_b64 exec, 0xffff")
    A("v_min_u32 v1, 13, v0")
    A("v_lshlrev_b32 v2, 4, v1")
    A("s_sub_u32 s89, s3, 2")
    A("s_mul_i32 s88, s89, 14336")
    A(f"s_mul_i32 s91, s{sH}, 224")
    A("s_add_u32 s88, s88, s91")
    A(f"s_add_u32 s90, s88, {GP}")
    LBL("L_hg")
    A("s_mov_b32 s88, s90")
    for ks in range(8):
        A(f"buffer_load_dwordx4 {vr(64+8*ks,4)}, v2, {srd(R_WS)}, s88 offen sc1")
        A("s_add_u32 s91, s88, 7168")
        A(f"buffer_load_dwordx4 {vr(64+8*ks+4,4)}, v2, {srd(R_WS)}, s91 offen sc1")
        if ks < 7:
            A("s_add_u32 s88, s88, 28672")
    A("s_waitcnt vmcnt(0)")
    tag_check([64 + 4 * k for k in range(16)], 4, 5, 6)
    retry_tail("L_hg", 4, sCNT)
    tag_strip([64 + 4 * k for k in range(16)])
    for ks in range(1, 8):
        for i in range(8):
            A(f"v_add_f32 v{64+i}, v{64+i}, v{64+8*ks+i}")
    for i in range(0, 8, 2):
        round_bf16_pair(64 + i, 65 + i, 42)
    A("s_mov_b32 s88, 0xbfb8aa3b")
    for i in range(4):
        A(f"v_mul_f32 v72, s88, v{64+i}")
        A("v_exp_f32 v72, v72")
        A("s_nop 0")
        A("v_add_f32 v72, 1.0, v72")
        A("v_rcp_f32 v73, v72")
        A("s_nop 0")
        A(f"v_mul_f32 v74, v{64+i}, v73")
        A(f"v_fma_f32 v75, -v74, v72, v{64+i}")
        A("v_fmac_f32 v74, v75, v73")
        A(f"v_mov_b32 v{64+i}, v74")
    round_bf16_pair(64, 65, 42)
    round_bf16_pair(66, 67, 42)
    for i in range(4):
        A(f"v_mul_f32 v{64+i}, v{64+i}, v{68+i}")
    round_bf16_pair(64, 65, 42)
    round_bf16_pair(66, 67, 42)
    A("v_lshlrev_b32 v3, 4, v0")
    A(f"v_add_u32 v3, s{sSL0}, v3")
    A("ds_write_b128 v3, v[64:67] offset:2048")
    A("s_mov_b64 exec, -1")
    A("s_waitcnt lgkmcnt(0)")
    A("v_lshlrev_b32 v3, 2, v10")
    A(f"v_add_u32 v3, s{sSL0}, v3")
    for t in range(7):
        A(f"ds_read_b32 v{20+t}, v3 offset:{2048+32*t}")
    A("s_waitcnt lgkmcnt(0)")
    for t in range(7):
        for i in range(4):
            w = VWD + 4 * t + i
            A(f"v_lshlrev_b32 v52, 16, v{w}")
            A(f"v_and_b32 v53, 0xffff0000, v{w}")
            op = "v_mul_f32" if t == 0 else "v_fmac_f32"
            A(f"{op} v{36+2*i}, v52, v{20+t}")
            A(f"{op} v{37+2*i}, v53, v{20+t}")
    A("v_lshlrev_b32 v1, 8, v10")
    A("v_lshl_add_u32 v1, v11, 5, v1")
    A(f"v_add_u32 v1, s{sSL0}, v1")
    A("ds_write_b128 v1, v[36:39]")
    A("ds_write_b128 v1, v[40:43] offset:16")
    A("s_waitcnt lgkmcnt(0)")
    A("v_lshlrev_b32 v1, 2, v0")
    A(f"v_add_u32 v1, s{sSL0}, v1")
    for rr in range(8):
        A(f"ds_read_b32 v{20+rr}, v1 offset:{256*rr}")
    A("s_waitcnt lgkmcnt(0)")
    for rr in range(1, 8):
        A(f"v_add_f32 v20, v20, v{20+rr}")
    A("ds_write_b32 v1, v20 offset:2560")
    A("s_waitcnt lgkmcnt(0)")
    for nt in range(4):
        A(f"ds_read_b32 v{4+nt}, v1 offset:{2560+64*nt}")
    A("s_waitcnt lgkmcnt(0)")
    tag_pack(4)
    A("v_lshlrev_b32 v1, 4, v0")
    A("s_lshl_b32 s88, s2, 9")
    A("s_lshl_b32 s91, s89, 8")
    A("s_add_u32 s88, s88, s91")
    A(f"s_add_u32 s88, s88, {OPB}")
    A("s_mov_b64 exec, 0xffff")
    A(f"buffer_store_dwordx4 v[4:7], v1, {srd(R_WS)}, s88 offen sc1")
    A("s_branch L_end")

    LBL("L_stream")
    stamp(0)
    sSW, sKV, sLB = 4, 5, 6
    A(f"s_sub_u32 s{sSW}, s3, 4")
    A("s_lshr_b32 s88, s2, 5")
    A("s_bfe_u32 s89, s2, 0x10004")
    A("s_lshl_b32 s89, s89, 3")
    A("s_add_u32 s88, s88, s89")
    A(f"s_lshl_b32 s{sKV}, s88, 23")
    A("s_and_b32 s88, s2, 15")
    A("s_lshl_b32 s88, s88, 16")
    A(f"s_add_u32 s{sKV}, s{sKV}, s88")
    A(f"s_lshl_b32 s{sLB}, s{sSW}, 14")
    A(f"s_lshl_b32 s88, s{sSW}, 10")
    A(f"s_add_u32 s{sKV}, s{sKV}, s88")
    A(f"s_add_u32 s{sKV}, s{sKV}, 7340032")
    A("v_lshrrev_b32 v1, 4, v0")
    A("v_and_b32 v2, 15, v0")
    for tt in range(4):
        A(f"v_add_u32 v3, {4*tt}, v1")
        A("v_xor_b32 v3, v3, v2")
        A("v_lshlrev_b32 v3, 4, v3")
        A(f"v_lshl_add_u32 v{4+tt}, v1, 8, v3")
    for tt in range(2):
        A(f"v_add_u32 v3, {4*tt}, v1")
        A("v_lshlrev_b32 v3, 1, v3")
        A("v_xor_b32 v3, v3, v2")
        A("v_lshlrev_b32 v3, 4, v3")
        A(f"v_lshl_add_u32 v{8+tt}, v1, 8, v3")
    n_issued = 0
    for (R, LB, isV) in ((R_K, L_K, 0), (R_V, L_V, 1)):
        A(f"s_mov_b32 s88, s{sKV}")
        A(f"s_add_u32 s89, s{sLB}, {LB}")
        for t in range(16):
            A("s_mov_b32 m0, s89")
            dep = DLO if n_issued < NLO else DEPTH
            if n_issued >= dep:
                A(f"s_waitcnt vmcnt({dep-1})")
            else:
                A("s_nop 0")
            vo = (8 + (t & 1)) if isV else (4 + (t & 3))
            A(f"buffer_load_dwordx4 v{vo}, {srd(R)}, s88 offen{NT} lds")
            n_issued += 1
            if FLATE and n_issued == FLATE:
                read_nonce("L_rn_str0")
                A(f"v_mov_b32 v17, {L_FLAGS + 20}")
                A("v_mov_b32 v16, s92")
                A("ds_write_b32 v17, v16")
            A("s_add_u32 s88, s88, 4096")
            A("s_add_u32 s89, s89, 1024")
    stamp(1)
    read_nonce("L_rn_str")
    C("read addresses")
    for s in range(4):
        A(f"v_add_u32 v3, {4*s}, v1")
        A("v_xor_b32 v3, v3, v2")
        A("v_lshlrev_b32 v3, 4, v3")
        A("v_lshl_add_u32 v3, v2, 8, v3")
        A(f"v_add_u32 v{10+s}, s{sLB}, v3")
    A("v_bfe_u32 v14, v0, 2, 2")
    A("v_and_b32 v19, 3, v0")
    A("v_lshl_add_u32 v16, v1, 2, v14")
    A("v_and_b32 v17, 7, v16")
    A("v_lshlrev_b32 v16, 8, v16")
    A("v_lshl_add_u32 v16, v19, 3, v16")
    A(f"v_add_u32 v16, s{sLB}, v16")
    A(f"v_add_u32 v16, {L_V}, v16")
    for nt in range(8):
        A(f"v_xor_b32 v3, {nt}, v17")
        A(f"v_lshl_add_u32 v{20+nt}, v3, 5, v16")
    A("v_and_b32 v3, 3, v2")
    A("v_lshlrev_b32 v3, 8, v3")
    A("v_lshl_add_u32 v3, v1, 4, v3")
    A(f"v_add_u32 v18, {L_Q}, v3")
    KF = 64
    VF = 128
    A("s_waitcnt vmcnt(16)")
    for T in range(4):
        for s in range(4):
            A(f"ds_read_b128 {vr(KF+16*T+4*s,4)}, v{10+s} offset:{4096*T}")
    A("s_waitcnt vmcnt(0)")
    stamp(2)
    for u in range(2):
        for nt in range(8):
            base = VF + 32 * u + 4 * nt
            A(f"ds_read_b64_tr_b16 {vr(base,2)}, v{20+nt} offset:{8192*u}")
            A(f"ds_read_b64_tr_b16 {vr(base+2,2)}, v{20+nt} offset:{8192*u+4096}")
    A(f"v_mov_b32 v5, {L_FLAGS + 24}")
    A("s_mov_b32 s90, 0")
    LBL("L_qw")
    A("ds_read_b64 v[32:33], v5")
    A("s_waitcnt lgkmcnt(0)")
    A("v_xor_b32 v32, s92, v32")
    A("v_xor_b32 v33, s92, v33")
    A("v_or_b32 v32, v32, v33")
    A("v_cmp_ne_u32 vcc, 0, v32")
    A("s_nop 4")
    A("s_cbranch_vccz L_qw_ok")
    A("s_sleep 1")
    A("s_add_u32 s90, s90, 1")
    A(f"s_cmp_lt_u32 s90, {LIMIT*8}")
    A("s_cbranch_scc1 L_qw")
    LBL("L_qw_ok")
    stamp(3)
    QF = 32
    for s in range(4):
        A(f"ds_read_b128 {vr(QF+4*s,4)}, v18 offset:{64*s}")
    A("s_waitcnt lgkmcnt(0)")
    SS = 48
    for T in range(4):
        for s in range(4):
            src = "0" if s == 0 else vr(SS + 4 * T, 4)
            A(f"v_mfma_f32_16x16x32_bf16 {vr(SS+4*T,4)}, {vr(KF+16*T+4*s,4)}, {vr(QF+4*s,4)}, {src}")
    A("s_nop 7")
    A("s_nop 1")
    C("softmax")
    A("s_mov_b32 s88, 0x3db504f3")
    for j in range(0, 16, 2):
        round_bf16_pair(SS + j, SS + j + 1, 3)
        A(f"v_mul_f32 v{SS+j}, s88, v{SS+j}")
        A(f"v_mul_f32 v{SS+j+1}, s88, v{SS+j+1}")
        round_bf16_pair(SS + j, SS + j + 1, 3)
    A(f"v_max3_f32 v28, v{SS}, v{SS+1}, v{SS+2}")
    for j in range(3, 15, 2):
        A(f"v_max3_f32 v28, v28, v{SS+j}, v{SS+j+1}")
    A(f"v_max_f32 v28, v28, v{SS+15}")
    swap_allreduce([28], [29], "max")
    A("s_mov_b32 s88, 0x3fb8aa3b")
    A("v_mul_f32 v30, s88, v28")
    for j in range(16):
        A(f"v_fma_f32 v{SS+j}, v{SS+j}, s88, -v30")
    for j in range(16):
        A(f"v_exp_f32 v{SS+j}, v{SS+j}")
    A("s_nop 0")
    A(f"v_add_f32 v29, v{SS}, v{SS+1}")
    for j in range(2, 16):
        A(f"v_add_f32 v29, v29, v{SS+j}")
    swap_allreduce([29], [30], "add")
    PP = 32
    for j in range(8):
        A(f"v_cvt_pk_bf16_f32 v{PP+j}, v{SS+2*j}, v{SS+2*j+1}")
    stamp(4)
    C("PV")
    OA = 192
    A("s_nop 1")
    for u in range(2):
        for nt in range(8):
            src = "0" if u == 0 else vr(OA + 4 * nt, 4)
            A(f"v_mfma_f32_16x16x32_bf16 {vr(OA+4*nt,4)}, {vr(PP+4*u,4)}, {vr(VF+32*u+4*nt,4)}, {src}")
    A("s_nop 7")
    A("s_nop 1")
    stamp(5)
    C("write wave partial to own K region, then flag")
    A("v_lshlrev_b32 v3, 4, v0")
    A(f"v_add_u32 v3, s{sLB}, v3")
    A("v_lshlrev_b32 v4, 3, v0")
    A(f"v_add_u32 v4, s{sLB}, v4")
    A("s_mov_b64 exec, 0xffff")
    for nt in range(8):
        A(f"ds_write_b128 v3, {vr(OA+4*nt,4)} offset:{256*nt}")
    A("s_mov_b64 exec, 15")
    A("ds_write_b64 v4, v[28:29] offset:2048")
    A("s_mov_b64 exec, -1")
    A("v_mov_b32 v4, s92")
    A(f"s_lshl_b32 s88, s{sSW}, 2")
    A(f"s_add_u32 s88, s88, {L_FLAGS}")
    A("v_mov_b32 v5, s88")
    A("s_waitcnt lgkmcnt(0)")
    A("ds_write_b32 v5, v4")
    A(f"v_mov_b32 v5, {L_FLAGS}")
    A("s_mov_b32 s90, 0")
    LBL("L_sf")
    A("ds_read_b128 v[32:35], v5")
    A("s_waitcnt lgkmcnt(0)")
    A("v_xor_b32 v32, v32, v4")
    A("v_xor_b32 v33, v33, v4")
    A("v_xor_b32 v34, v34, v4")
    A("v_xor_b32 v35, v35, v4")
    A("v_or3_b32 v32, v32, v33, v34")
    A("v_or_b32 v32, v32, v35")
    A("v_cmp_ne_u32 vcc, 0, v32")
    A("s_nop 4")
    A("s_cbranch_vccz L_sf_ok")
    A("s_add_u32 s90, s90, 1")
    A(f"s_cmp_lt_u32 s90, {LIMIT*8}")
    A("s_cbranch_scc1 L_sf")
    LBL("L_sf_ok")
    stamp(6)
    C("combine 4 waves: this wave handles head hh = sw; lane dq=l&31 -> d = dq + 32*i")
    A(f"s_lshl_b32 s88, s{sSW}, 2")
    A("v_and_b32 v5, 31, v0")
    A("v_lshlrev_b32 v3, 4, v5")
    A("v_add_u32 v3, s88, v3")
    A(f"s_lshl_b32 s88, s{sSW}, 3")
    A("v_mov_b32 v4, s88")
    for wv in range(4):
        A(f"ds_read2st64_b32 {vr(32+4*wv,2)}, v3 offset0:{64*wv} offset1:{64*wv+2}")
        A(f"ds_read2st64_b32 {vr(34+4*wv,2)}, v3 offset0:{64*wv+4} offset1:{64*wv+6}")
        A(f"ds_read_b64 {vr(64+2*wv,2)}, v4 offset:{L_K+16384*wv+2048}")
    A("s_waitcnt lgkmcnt(0)")
    for wv in range(4):
        A(f"v_mov_b32 v{50+wv}, v{64+2*wv}")
        A(f"v_mov_b32 v{54+wv}, v{65+2*wv}")
    A("v_max3_f32 v58, v50, v51, v52")
    A("v_max_f32 v58, v58, v53")
    A("s_mov_b32 s88, 0x3fb8aa3b")
    for wv in range(4):
        A(f"v_sub_f32 v{50+wv}, v{50+wv}, v58")
        A(f"v_mul_f32 v{50+wv}, s88, v{50+wv}")
        A(f"v_exp_f32 v{50+wv}, v{50+wv}")
    A("s_nop 0")
    for i in range(4):
        A(f"v_mul_f32 v{60+i}, v{32+i}, v50")
    A("v_mul_f32 v59, v54, v50")
    for wv in range(1, 4):
        for i in range(4):
            A(f"v_fmac_f32 v{60+i}, v{32+4*wv+i}, v{50+wv}")
        A(f"v_fmac_f32 v59, v{54+wv}, v{50+wv}")
    A("v_cmp_gt_u32 vcc, 32, v0")
    A("v_lshlrev_b32 v3, 4, v5")
    A("s_nop 0")
    A("v_cndmask_b32 v60, v58, v60, vcc")
    A("v_cndmask_b32 v61, v59, v61, vcc")
    A("v_cndmask_b32 v62, 0, v62, vcc")
    A("v_cndmask_b32 v63, 0, v63, vcc")
    A("v_mov_b32 v4, 0x200")
    A("v_cndmask_b32 v3, v4, v3, vcc")
    tag_pack(60)
    A("s_lshl_b32 s88, s2, 2")
    A(f"s_add_u32 s88, s88, s{sSW}")
    A(f"s_mul_i32 s88, s88, {AP_REC}")
    A(f"s_add_u32 s88, s88, {AP}")
    stamp(7)
    A("s_mov_b32 exec_hi, 1")
    A(f"buffer_store_dwordx4 v[60:63], v3, {srd(R_WS)}, s88 offen sc1")
    stamp(8)
    if PROF:
        stamp_store(1, 9)
    LBL("L_end")
    A("s_endpgm")
    nv = 256 if PROF else 224
    out.append('.section .rodata,"a"')
    out.append(".p2align 6")
    out.append(f".amdhsa_kernel {NAME}_kernel")
    out.append(f"  .amdhsa_next_free_vgpr {nv}")
    out.append("  .amdhsa_next_free_sgpr 96")
    out.append(f"  .amdhsa_accum_offset {nv}")
    out.append("  .amdhsa_group_segment_fixed_size 0")
    out.append("  .amdhsa_kernarg_size 96")
    out.append("  .amdhsa_user_sgpr_count 2")
    out.append("  .amdhsa_user_sgpr_kernarg_segment_ptr 1")
    out.append("  .amdhsa_system_sgpr_workgroup_id_x 1")
    out.append(".end_amdhsa_kernel")


gen()
txt = "\n".join(out) + "\n"
dst = sys.argv[1] if len(sys.argv) > 1 else "cdna_kernels/" + NAME + ".s"
open(dst, "w").write(txt)
print("wrote", dst, len(out), "lines", "STAMP", STAMP)
```
